```python
import torch

def _softmax(x, axis=-1):
    return torch.softmax(x, dim=axis)
def _gelu(x):
    return torch.nn.functional.gelu(x, approximate="tanh")
def _silu(x):
    return torch.nn.functional.silu(x)
def _sigmoid(x):
    return torch.sigmoid(x)
def _layernorm(x, axis=-1, eps=1e-5):
    m = x.mean(dim=axis, keepdim=True)
    v = x.var(dim=axis, keepdim=True, unbiased=False)
    return (x - m) / torch.sqrt(v + eps)
def _scatter_add(tgt, idx, src, axis=0):
    return tgt.clone().index_add_(axis, idx, src)
def _segment_sum(src, seg, n):
    out = torch.zeros((n,) + src.shape[1:], dtype=src.dtype)
    return out.index_add_(0, seg, src)
def _pad(x, pw):
    flat = tuple(v for pair in reversed(pw) for v in pair)
    return torch.nn.functional.pad(x, flat)

kernel_name = 'sequential_preLN__grouped_kv_mqa__dense_activation_gelu__prompt'

def setup_inputs():

    _w = (lambda a: (lambda t: t.to(torch.bfloat16) if t.is_floating_point() else t)(torch.as_tensor(a)))
    def _A_setup():
        B, S, D, H = 1, 2048, 448, 16
        Dh = D // H
        return {
            "x": _w((lambda *s: torch.randn(*s, dtype=torch.bfloat16) * 0.05)(B, S, D)),
            "wq": _w((lambda *s: torch.randn(*s, dtype=torch.bfloat16) * 0.05)(D, H * Dh)),
            "wk": _w((lambda *s: torch.randn(*s, dtype=torch.bfloat16) * 0.05)(D, Dh)),
            "wv": _w((lambda *s: torch.randn(*s, dtype=torch.bfloat16) * 0.05)(D, Dh)),
            "wo": _w((lambda *s: torch.randn(*s, dtype=torch.bfloat16) * 0.05)(H * Dh, D)),
        }
    _A_in = _A_setup()

    def _B_setup():
        B, S, D, F = 1, 2048, 448, 1792
        return {
            "x": _w((lambda *s: torch.randn(*s, dtype=torch.bfloat16) * 0.05)(B, S, D)),
            "w1": _w((lambda *s: torch.randn(*s, dtype=torch.bfloat16) * 0.8)(D, F) * (D ** -0.5)),
            "b1": _w((lambda *s: torch.randn(*s, dtype=torch.bfloat16) * 12.8)(F) * 0.01),
            "w2": _w((lambda *s: torch.randn(*s, dtype=torch.bfloat16) * 0.4)(F, D) * (F ** -0.5)),
            "b2": _w((lambda *s: torch.randn(*s, dtype=torch.bfloat16) * 6.4)(D) * 0.01),
        }
    _B_in = _B_setup()

    return {
        "A_x": _A_in["x"],
        "A_wq": _A_in["wq"],
        "A_wk": _A_in["wk"],
        "A_wv": _A_in["wv"],
        "A_wo": _A_in["wo"],
        "B_x": _B_in["x"],
        "B_w1": _B_in["w1"],
        "B_b1": _B_in["b1"],
        "B_w2": _B_in["w2"],
        "B_b2": _B_in["b2"],
    }

def reference(A_x, A_wq, A_wk, A_wv, A_wo, B_x, B_w1, B_b1, B_w2, B_b2):
    def _A_ref(x, wq, wk, wv, wo):
        B, S, D = x.shape
        H = 16
        Dh = D // H
        q = (lambda x, *d: x.permute(*d))((x @ wq).reshape(B, S, H, Dh), 0, 2, 1, 3)
        k = x @ wk
        v = x @ wv
        scores = torch.einsum("bhqd,bkd->bhqk", q, k) * (Dh ** -0.5)
        p = _softmax(scores, axis=-1)
        o = torch.einsum("bhqk,bkd->bhqd", p, v)
        return (lambda x, *d: x.permute(*d))(o, 0, 2, 1, 3).reshape(B, S, H * Dh) @ wo

    def _B_ref(x, w1, b1, w2, b2):
        h = torch.einsum("bsd,df->bsf", x, w1) + b1
        h = _gelu(h)
        return torch.einsum("bsf,fd->bsd", h, w2) + b2

    x = A_x
    h = x + _A_ref(_layernorm(x, axis=-1), A_wq, A_wk, A_wv, A_wo)
    h2 = h + _B_ref(_layernorm(h, axis=-1), B_w1, B_b1, B_w2, B_b2)
    return h2
```

```python
import re

TRANS = ("v_exp_f32", "v_log_f32", "v_rcp_f32", "v_rsq_f32", "v_sqrt_f32", "v_sin_f32", "v_cos_f32")
RMW_VALU = ("v_fmac_f32", "v_dot2c_f32_bf16", "v_mac_f32")
REG_RE = re.compile(r"^(-|\|)?(abs\()?([vas])(\d+|\[(\d+):(\d+)\])\)?\|?$")


def parse_reg(tok):
    tok = tok.strip()
    if tok in ("vcc",):
        return [("s", "vcc_lo"), ("s", "vcc_hi")]
    if tok in ("vcc_lo", "vcc_hi", "m0", "exec_lo", "exec_hi"):
        return [("s", tok)]
    if tok == "exec":
        return [("s", "exec_lo"), ("s", "exec_hi")]
    m = REG_RE.match(tok)
    if not m:
        return []
    k = m.group(3)
    if m.group(5) is not None:
        return [(k, i) for i in range(int(m.group(5)), int(m.group(6)) + 1)]
    return [(k, int(m.group(4)))]


def split_ops(rest):
    out, depth, cur = [], 0, ""
    for ch in rest:
        if ch in "[(":
            depth += 1
        if ch in "])":
            depth -= 1
        if ch == "," and depth == 0:
            out.append(cur.strip())
            cur = ""
        else:
            cur += ch
    if cur.strip():
        out.append(cur.strip())
    if out:
        parts = out[-1].split()
        out[-1] = parts[0]
        mods = parts[1:]
    else:
        mods = []
    return out, mods


INLINE_F = {"0.5", "-0.5", "1.0", "-1.0", "2.0", "-2.0", "4.0", "-4.0"}


def is_literal(tok):
    if tok in INLINE_F:
        return False
    try:
        v = int(tok, 0)
    except ValueError:
        try:
            float(tok)
            return True
        except ValueError:
            return False
    return not (-16 <= v <= 64)


VOP3_ONLY = ("v_fma_f32", "v_mfma", "v_cvt_pk_bf16_f32", "v_max3", "v_min3", "v_med3", "v_perm_b32", "v_lshl_add_u32",
             "v_add_lshl_u32", "v_lshl_or_b32", "v_and_or_b32", "v_or3_b32", "v_add3_u32", "v_mul_lo_u32",
             "v_mul_hi_u32", "v_mad_u32_u24", "v_bfe_u32", "v_bfi_b32", "v_dot2_f32_bf16", "v_pk_", "v_readlane_b32",
             "v_writelane_b32", "v_accvgpr_", "v_bitop3", "v_mbcnt", "v_xad_u32", "v_lshlrev_b64", "v_alignbit")


class Ins:
    __slots__ = ("text", "op", "rd", "wr", "kind", "size", "mods", "ops", "passes", "srcc", "srcab", "tag", "hot",
                 "label", "promotable")

    def __init__(self, text):
        self.text = text
        self.label = None
        self.tag = None
        self.hot = False
        self.passes = 0
        self.srcc = []
        self.srcab = []
        self.promotable = False
        t = text.strip()
        sp = t.split(None, 1)
        self.op = op = sp[0]
        ops, mods = split_ops(sp[1]) if len(sp) > 1 else ([], [])
        self.ops, self.mods = ops, mods
        regs = [parse_reg(o) for o in ops]
        rd, wr = [], []
        base = op.replace("_e32", "").replace("_e64", "").replace("_dpp", "").replace("_sdwa", "")
        if op.startswith("v_mfma"):
            self.kind = "mfma"
            wr = regs[0]
            self.srcab = regs[1] + regs[2]
            self.srcc = regs[3]
            rd = self.srcab + self.srcc
            self.passes = 8 if "32x32" in op else 4
            self.size = 8
        elif op.startswith("v_"):
            self.kind = "trans" if base in TRANS else "valu"
            if base.startswith("v_cmp"):
                wr = regs[0]
                rd = sum(regs[1:], [])
                if base.startswith("v_cmpx"):
                    wr = wr + parse_reg("exec")
            elif base.startswith("v_permlane") and "swap" in base:
                wr = regs[0] + regs[1]
                rd = regs[0] + regs[1]
            elif base in ("v_add_co_u32", "v_sub_co_u32", "v_addc_co_u32"):
                wr = regs[0] + regs[1]
                rd = sum(regs[2:], [])
            else:
                wr = regs[0]
                rd = sum(regs[1:], [])
                if base in RMW_VALU or "UNUSED_PRESERVE" in " ".join(mods) or base == "v_writelane_b32":
                    rd = rd + regs[0]
                if "_dpp" in op and not any("bound_ctrl" in m for m in mods):
                    rd = rd + regs[0]
                if base == "v_cndmask_b32" and len(ops) == 3:
                    rd = rd + parse_reg("vcc")
            vop3 = any(base.startswith(p) for p in VOP3_ONLY) or "_e64" in op
            hasmod = any(o.startswith("-v") or o.startswith("|") or o.startswith("abs(") or o.startswith("-a") for o in ops)
            hasmod = hasmod or any(m.startswith("mul:") or m.startswith("div:") or m == "clamp" or m.startswith("op_sel") for m in mods)
            if "_dpp" in op or "_sdwa" in op:
                self.size = 8
            elif vop3 or hasmod:
                self.size = 8
            elif base.startswith("v_cmp") and ops[0] != "vcc":
                self.size = 8
            elif base == "v_cndmask_b32" and len(ops) == 4 and ops[3] != "vcc":
                self.size = 8
            elif base in ("v_fmaak_f32", "v_fmamk_f32"):
                self.size = 8
            elif any(is_literal(o) for o in ops[1:]):
                self.size = 8
            elif len(ops) >= 3 and not base.startswith("v_cmp") and not base.startswith("v_permlane") and \
                    not ops[2].startswith("v") and base not in ("v_readfirstlane_b32",):
                self.size = 8
            elif base.startswith("v_cmp") and not ops[2].startswith("v"):
                self.size = 8
            else:
                self.size = 4
                if op == base and base not in ("v_readfirstlane_b32", "v_nop") and not base.startswith("v_permlane") \
                        and base not in ("v_dot2c_f32_bf16",):
                    self.promotable = True
        elif op.startswith("ds_"):
            self.kind = "ds"
            self.size = 8
            if op.startswith("ds_read") or "_rtn" in op or op.startswith("ds_bpermute") or op.startswith("ds_swizzle"):
                wr = regs[0]
                rd = sum(regs[1:], [])
            else:
                rd = sum(regs, [])
            if "addtid" in op:
                rd = rd + [("s", "m0")]
        elif op.startswith("buffer_") or op.startswith("global_"):
            self.kind = "vmem"
            self.size = 8
            if op in ("buffer_inv", "buffer_wbl2"):
                pass
            elif "lds" in mods or "_lds_" in op:
                rd = sum(regs, []) + [("s", "m0")]
            elif "_load" in op:
                wr = regs[0]
                rd = sum(regs[1:], [])
            elif "atomic" in op and "sc0" in mods:
                wr = regs[0]
                rd = sum(regs, [])
            else:
                rd = sum(regs, [])
        elif op.startswith("s_load") or op in ("s_memtime", "s_memrealtime"):
            self.kind = "smem"
            self.size = 8
            wr = regs[0]
            rd = sum(regs[1:], [])
        elif op.startswith("s_"):
            self.kind = "salu"
            self.size = 4
            if op in ("s_waitcnt", "s_nop", "s_barrier", "s_endpgm", "s_sleep", "s_setprio", "s_branch") or op.startswith("s_cbranch"):
                self.kind = "sctl"
                if op == "s_cbranch_vccz" or op == "s_cbranch_vccnz":
                    rd = parse_reg("vcc")
            elif op.startswith("s_cmp") or op.startswith("s_bitcmp"):
                rd = sum(regs, [])
                wr = [("s", "scc")]
            else:
                wr = regs[0] + [("s", "scc")]
                rd = sum(regs[1:], [])
                if "saveexec" in op:
                    wr = wr + parse_reg("exec")
                if op in ("s_addk_i32", "s_mulk_i32"):
                    rd = rd + regs[0]
            if self.kind == "salu" and not op.endswith("k_i32") and not op.startswith("s_cmpk") and op != "s_getreg_b32" and any(is_literal(o) for o in ops):
                self.size = 8
        else:
            raise ValueError("unknown instruction " + text)
        self.rd, self.wr = rd, wr


class Gen:
    def __init__(self):
        self.items = []
        self.vm_issued = 0
        self.lg_issued = 0
        self.vm_done = 0
        self.lg_done = 0
        self.pend = {}
        self.tags = {}
        self.smem_pending = False
        self.hot = False
        self.nlabel = 0

    def _wait(self, vm=None, lg=None):
        parts = []
        if vm is not None:
            n = min(self.vm_issued - vm - 1, 63)
            if vm >= self.vm_done:
                parts.append(f"vmcnt({n})")
                self.vm_done = max(self.vm_done, self.vm_issued - n)
        if lg is not None:
            if lg >= self.lg_done:
                n = min(self.lg_issued - lg - 1, 15)
                if self.smem_pending:
                    n = 0
                parts.append(f"lgkmcnt({n})")
                self.lg_done = max(self.lg_done, self.lg_issued - n)
                if n == 0:
                    self.smem_pending = False
        if parts:
            self._raw("s_waitcnt " + " ".join(parts))

    def _raw(self, text):
        i = Ins(text)
        i.hot = self.hot
        self.items.append(i)
        return i

    def e(self, text, tag=None, nowait=False):
        if "\n" in text:
            for l in text.split("\n"):
                l = l.split(";")[0].strip()
                if l:
                    self.e(l, tag, nowait)
            return
        i = Ins(text)
        i.hot = self.hot
        if i.op == "s_waitcnt":
            m = re.search(r"vmcnt\((\d+)\)", text)
            if m:
                self.vm_done = max(self.vm_done, self.vm_issued - int(m.group(1)))
            m = re.search(r"lgkmcnt\((\d+)\)", text)
            if m:
                n = int(m.group(1))
                if n == 0:
                    self.smem_pending = False
                    self.lg_done = self.lg_issued
                elif not self.smem_pending:
                    self.lg_done = max(self.lg_done, self.lg_issued - n)
            self.items.append(i)
            return i
        if not nowait:
            vm = lg = None
            for r in i.rd + i.wr:
                p = self.pend.get(r)
                if p is None:
                    continue
                if r not in i.rd and ((p[0] == "vm" and i.kind == "vmem") or (p[0] == "lg" and i.kind == "ds")):
                    continue
                if p[0] == "vm":
                    vm = p[1] if vm is None else max(vm, p[1])
                else:
                    lg = p[1] if lg is None else max(lg, p[1])
            self._wait(vm, lg)
        self.items.append(i)
        if i.kind == "vmem":
            idx = self.vm_issued
            self.vm_issued += 1
            for r in i.wr:
                self.pend[r] = ("vm", idx)
            if tag:
                self.tags[tag] = ("vm", idx)
        elif i.kind in ("ds", "smem"):
            idx = self.lg_issued
            self.lg_issued += 1
            if i.kind == "smem":
                self.smem_pending = True
            for r in i.wr:
                self.pend[r] = ("lg", idx)
            if tag:
                self.tags[tag] = ("lg", idx)
        else:
            for r in i.wr:
                self.pend.pop(r, None)
        return i

    def wait_tag(self, *tags):
        vm = lg = None
        for t in tags:
            k, idx = self.tags[t]
            if k == "vm":
                vm = idx if vm is None else max(vm, idx)
            else:
                lg = idx if lg is None else max(lg, idx)
        self._wait(vm, lg)

    def wait_regs(self, regs):
        vm = lg = None
        for r in parse_reg(regs):
            p = self.pend.get(r)
            if p is None:
                continue
            if p[0] == "vm":
                vm = p[1] if vm is None else max(vm, p[1])
            else:
                lg = p[1] if lg is None else max(lg, p[1])
        self._wait(vm, lg)

    def wait_lds(self):
        if self.lg_done < self.lg_issued or self.smem_pending:
            self.e("s_waitcnt lgkmcnt(0)")

    def wait_vm_all(self):
        if self.vm_done < self.vm_issued:
            self.e("s_waitcnt vmcnt(0)")

    def barrier(self):
        self.wait_lds()
        self.e("s_barrier")

    def newlabel(self, name):
        self.nlabel += 1
        return f"L_{name}_{self.nlabel}"

    def label(self, name):
        self.items.append(name + ":")

    def raw(self, s):
        self.items.append(s)

    def state(self):
        return (self.vm_issued, self.lg_issued, self.vm_done, self.lg_done, dict(self.pend), dict(self.tags), self.smem_pending)

    def set_state(self, st):
        (self.vm_issued, self.lg_issued, self.vm_done, self.lg_done, p, t, self.smem_pending) = st
        self.pend, self.tags = dict(p), dict(t)

    def join(self, states):
        VM = max(s[0] for s in states)
        LG = max(s[1] for s in states)
        pend, tags = {}, {}
        for s in states:
            for src, dst in ((s[4], pend), (s[5], tags)):
                for r, (k, idx) in src.items():
                    issued, done = (s[0], s[2]) if k == "vm" else (s[1], s[3])
                    tot = VM if k == "vm" else LG
                    if idx < done:
                        nidx = -1
                    else:
                        nidx = tot - (issued - idx)
                    if r not in dst or dst[r][1] < nidx or dst[r][0] != k:
                        if r in dst and dst[r][0] != k and dst[r][1] >= 0 and nidx >= 0:
                            raise ValueError(f"join: {r} pending on different counters")
                        if r in dst and dst[r][0] != k and nidx < 0:
                            continue
                        dst[r] = (k, nidx)
        vm_done = min(VM - (s[0] - s[2]) for s in states)
        lg_done = min(LG - (s[1] - s[3]) for s in states)
        self.set_state((VM, LG, vm_done, lg_done, {r: v for r, v in pend.items() if v[1] >= 0}, tags, any(s[6] for s in states)))

    @staticmethod
    def need(prod, cons):
        n = 0
        pw, cr, cw = set(prod.wr), set(cons.rd), set(cons.wr)
        pv = {r for r in pw if r[0] in "va"}
        ps = {r for r in pw if r[0] == "s" and r[1] != "scc"}
        isvalu = prod.kind in ("valu", "trans")
        cvalu = cons.kind in ("valu", "trans")
        if isvalu:
            if cons.kind == "mfma" and pv & cr:
                n = max(n, 2)
            if cons.kind == "mfma" and ("s", "exec_lo") in ps:
                n = max(n, 4)
            if cvalu and ("_dpp" in cons.op) and pv & cr:
                n = max(n, 2)
            if cvalu and "_dpp" in cons.op and ("s", "exec_lo") in ps:
                n = max(n, 5)
            if cons.op.startswith("v_permlane") and pv & cr:
                n = max(n, 2)
            if (cons.op.startswith("v_readlane") or cons.op.startswith("v_readfirstlane")) and pv & cr:
                n = max(n, 1)
            if prod.kind == "trans" and cons.kind == "valu" and pv & cr:
                n = max(n, 1)
            if cons.kind == "vmem" and ps & cr:
                n = max(n, 5)
            if cvalu and ps & cr:
                n = max(n, 4 if cons.op.startswith(("v_readlane", "v_writelane")) else 2)
            if cons.kind in ("salu", "sctl", "smem") and ps & cr:
                n = max(n, 1)
            if ("_sdwa" in prod.op or any(m.startswith("op_sel") for m in prod.mods)) and cvalu and pv & (cr | cw):
                n = max(n, 1)
        if prod.op.startswith("v_dot") and pv & (cr | cw):
            same_c = cons.op == prod.op and not (pv & set(sum([parse_reg(o) for o in cons.ops[1:3]], [])))
            if not same_c:
                n = max(n, 3)
        if prod.kind == "salu" and ("s", "m0") in ps and ("s", "m0") in cr and cons.kind in ("vmem", "ds"):
            n = max(n, 1)
        if prod.kind == "salu" and ("s", "exec_lo") in ps and cons.kind == "valu" and \
                ("_dpp" in cons.op or cons.op.startswith(("v_permlane", "v_readlane", "v_readfirstlane"))):
            n = max(n, 1)
        if prod.kind == "vmem" and "store" in prod.op and ("x4" in prod.op or "x3" in prod.op):
            data = set(parse_reg(prod.ops[0] if prod.op.startswith("buffer") else prod.ops[1]))
            if data & cw:
                n = max(n, 2)
        if prod.kind == "mfma":
            P = prod.passes
            D = set(prod.wr)
            if cons.kind == "mfma":
                if D & set(cons.srcab):
                    n = max(n, 8 if P == 4 else 12)
                cc = set(cons.srcc)
                if D & cc:
                    if not (cc == D and cons.passes == P):
                        n = max(n, 6 if P == 4 else 10)
                elif D & cw and not (cw == D and cons.passes == P):
                    n = max(n, 6 if P == 4 else 10)
            elif cons.kind in ("valu", "trans", "vmem", "ds"):
                if D & (cr | cw):
                    n = max(n, 8 if P == 4 else 12)
            if cvalu and set(prod.srcc) & cw:
                n = max(n, 3 if P == 4 else 7)
        return n

    def finish(self, align_hot=True):
        items = list(self.items)

        def states(x):
            if x.op == "s_nop":
                return int(x.ops[0], 0) + 1
            return 1

        def lookback(k, dist, cons, depth=0):
            miss = 0
            j = k - 1
            while j >= 0 and dist < 14:
                it = items[j]
                if isinstance(it, str):
                    if it.endswith(":") and depth < 3:
                        name = it[:-1]
                        for b in branches.get(name, []):
                            miss = max(miss, lookback(items.index(b) + 1, dist, cons, depth + 1))
                    j -= 1
                    continue
                if it.op in ("s_branch", "s_endpgm") and not (depth > 0 and j == k - 1):
                    break
                miss = max(miss, self.need(it, cons) - dist)
                dist += states(it)
                j -= 1
            return miss

        branches = {}
        for x in items:
            if isinstance(x, Ins) and x.kind == "sctl" and x.ops and (x.op == "s_branch" or x.op.startswith("s_cbranch")):
                branches.setdefault(x.ops[0], []).append(x)
        for _pass in range(3):
            changed = False
            k = 0
            while k < len(items):
                it = items[k]
                if isinstance(it, Ins):
                    miss = lookback(k, 0, it)
                    if miss > 0:
                        nop = Ins(f"s_nop {miss - 1}")
                        nop.hot = it.hot
                        items.insert(k, nop)
                        k += 1
                        changed = True
                k += 1
            if not changed:
                break
        if align_hot:
            off = 0
            last4 = None
            for it in items:
                if isinstance(it, str):
                    if it.startswith(".p2align"):
                        off = 0
                        last4 = None
                    continue
                if it.size == 8 and off % 8 == 4 and it.hot and last4 is not None:
                    last4.text = last4.text.replace(last4.op, last4.op + "_e64", 1)
                    last4.op += "_e64"
                    last4.size = 8
                    off += 4
                    last4 = None
                if it.size == 8:
                    last4 = None
                else:
                    last4 = it if it.promotable else last4
                off += it.size
        self.final = items
        return "\n".join(it if isinstance(it, str) else "    " + it.text for it in items) + "\n"

    def stats(self):
        n = sum(1 for i in self.final if isinstance(i, Ins))
        b = sum(i.size for i in self.final if isinstance(i, Ins))
        nops = sum(1 for i in self.final if isinstance(i, Ins) and i.op == "s_nop")
        return n, b, nops
```

```python
import sys, struct
from asmgen import Gen

KNAME = "sequential_preLN__grouped_kv_mqa__dense_activation_gelu__prompt_kernel"
PROF = "--prof" in sys.argv
FORCE_SLOW = "--slow" in sys.argv


def f2u(x):
    return struct.unpack("<I", struct.pack("<f", x))[0]


WS_FLAG1, WS_FLAG2, WS_FLAG3 = 0x0, 0x2000, 0x4000
WS_KV = 0x8000
WS_RM = 0xE0000
WS_WOF = 0x60000
WS_W1F = 0x100000
WS_W2F = 0x290000
WS_OF = 0x480000
WS_HF = 0x680000
WS_HID = 0x880000
WS_PROF = 0x1000000
WS_BYTES = 0x10000000
OOB = 0x7F000000
XB = 7296
L_MISC = 0
L_STATS = 256
L_B1 = 768
L_B2 = 1792
L_SQ = 2048
L_MX = 3072
L_QX = 8192
L_X = 16384
L_WQ = L_X + 58368
L_WKV = L_WQ + 57344
L_CSX = L_WKV
L_END = L_WKV + 25600
L_COMB = L_WQ
L_RED3 = L_X
L_HSH = L_WQ
L_RED5 = L_X
LDS_BYTES = 160 * 1024
SPIN_MAX = 1 << 17

sW, sJ, sG, sNONCE = "s4", "s5", "s6", "s7"
SRD_X, SRD_WS, SRD_WQ, SRD_WKV, SRD_PP, SRD_OUT, SRD_DBG, SRD_B = (f"s[{i}:{i+3}]" for i in (8, 12, 44, 48, 52, 56, 60, 64))
sT = [f"s{i}" for i in range(68, 84)]
sKV, sOFW, sOFR, sHFW, sHFR, sHIDW, sHIDR, sWOB, sW1B, sW2B = (f"s{i}" for i in range(84, 94))
sSPIN, sQ16, sKIND, sC = "s94", "s95", "s96", "s97"
sMASKH = "s[98:99]"
sPIDX = "s100"
sRET = "s101"

g = Gen()
e = g.e


def vr(a, n=1):
    return f"v{a}" if n == 1 else f"v[{a}:{a+n-1}]"


def ar(a, n=1):
    return f"a{a}" if n == 1 else f"a[{a}:{a+n-1}]"


def srd(name, lo, nbytes):
    b = int(name[2:name.index(":")])
    e(f"s_mov_b32 s{b}, s{lo}")
    e(f"s_and_b32 s{b+1}, s{lo+1}, 0xffff")
    e(f"s_mov_b32 s{b+2}, {nbytes:#x}")
    e(f"s_mov_b32 s{b+3}, 0x20000")


vLANE, vL16 = "v0", "v1"
vZERO = "v2"
vWOA0, vWOA1, vW1B, vEXC = "v3", "v4", "v5", "v6"
vT0, vT1, vT2 = "v7", "v8", "v9"
XRES = 10
vW2A = "v18"
vT3 = "v19"
S0, S1, P0, P1, OA, KVB, WOR, SENT, POLL = 20, 36, 52, 60, 68, 132, 180, 244, 248
vCHK = "v252"
vT4, vT5, vT6 = "v253", "v254", "v255"
AQ = 224

prof_n = [0]


def stamp(name):
    if not PROF:
        return
    k = prof_n[0]
    prof_n[0] += 1
    PROF_NAMES.append(name)
    e("s_memtime s[42:43]")
    e("s_waitcnt lgkmcnt(0)")
    e(f"v_writelane_b32 v251, s42, {k}")


PROF_NAMES = []


def mfma32(d, a, b, c):
    e(f"v_mfma_f32_32x32x16_bf16 {d}, {a}, {b}, {c}")


def mfma16(d, a, b, c):
    e(f"v_mfma_f32_16x16x32_bf16 {d}, {a}, {b}, {c}")


def dma(voff, srdn, soff, imm=0, tag=None):
    e(f"buffer_load_dwordx4 {voff}, {srdn}, {soff} offen{f' offset:{imm}' if imm else ''} lds", tag=tag)


def ld4(dst, voff, soff, imm=0, sc1=True, tag=None, srdn=SRD_WS):
    e(f"buffer_load_dwordx4 {dst}, {voff}, {srdn}, {soff} offen{f' offset:{imm}' if imm else ''}{' sc1' if sc1 else ''}", tag=tag)


def st4(src, voff, soff, imm=0, tag=None):
    e(f"buffer_store_dwordx4 {src}, {voff}, {SRD_WS}, {soff} offen{f' offset:{imm}' if imm else ''} sc1", tag=tag)


def wave_max_u32(v, tmp, sdst, rows=4):
    for r in (1, 2, 4, 8):
        e(f"v_max_u32_dpp {v}, {v}, {v} row_ror:{r} row_mask:0xf bank_mask:0xf")
    e(f"v_readlane_b32 {sdst}, {v}, 0")
    for k in range(1, rows):
        e(f"v_readlane_b32 {tmp}, {v}, {16*k}")
        e(f"s_max_u32 {sdst}, {sdst}, {tmp}")


def row_stats(ldsaddr_v, base, statsaddr_v):
    X = base
    a0, a1, q0, q1, one = (vr(base + 28 + i) for i in range(5))
    for i in range(7):
        e(f"ds_read_b128 {vr(X+4*i,4)}, {ldsaddr_v} offset:{i*1024}")
    e(f"v_mov_b32 {one}, 0x3f803f80")
    for i in range(28):
        a, q = (a0, q0) if i % 2 == 0 else (a1, q1)
        c1, c2 = (a, q) if i >= 2 else ("0", "0")
        e(f"v_dot2_f32_bf16 {a}, {vr(X+i)}, {one}, {c1}")
        e(f"v_dot2_f32_bf16 {q}, {vr(X+i)}, {vr(X+i)}, {c2}")
    e("s_nop 2")
    e(f"v_add_f32 {a0}, {a0}, {a1}")
    e(f"v_add_f32 {q0}, {q0}, {q1}")
    for m in ("quad_perm:[1,0,3,2]", "quad_perm:[2,3,0,1]", "row_half_mirror"):
        e(f"v_add_f32_dpp {a0}, {a0}, {a0} {m} row_mask:0xf bank_mask:0xf")
        e(f"v_add_f32_dpp {q0}, {q0}, {q0} {m} row_mask:0xf bank_mask:0xf")
    mu, rs = vr(base + 34), vr(base + 35)
    e(f"v_mul_f32 {mu}, {f2u(1/448):#x}, {a0}")
    e(f"v_mul_f32 {q0}, {f2u(1/448):#x}, {q0}")
    e(f"v_fma_f32 {q0}, -{mu}, {mu}, {q0}")
    e(f"v_max_f32 {q0}, 0, {q0}")
    e(f"v_add_f32 {q0}, {f2u(1e-5):#x}, {q0}")
    e(f"v_rsq_f32 {rs}, {q0}")
    e("s_nop 0")
    e(f"ds_write_b64 {statsaddr_v}, {vr(base+34,2)}")


def last_wave_signal_begin(cnt_off, vtmp):
    e(f"v_mov_b32 {vtmp}, 1")
    e("s_mov_b64 exec, 1")
    e(f"ds_add_rtn_u32 {vtmp}, {vZERO}, {vtmp} offset:{L_MISC+cnt_off}")
    e("s_mov_b64 exec, -1")


def spin_guard(lbl_out):
    e(f"s_add_u32 {sSPIN}, {sSPIN}, 1")
    e(f"s_cmp_gt_u32 {sSPIN}, {SPIN_MAX}")
    e(f"s_cbranch_scc1 {lbl_out}")


g.raw(f"{KNAME}:")
e("s_cmp_ge_u32 s2, 256")
e("s_cbranch_scc1 L_end")
e("s_load_dwordx16 s[16:31], s[0:1], 0")
e("s_load_dwordx8 s[32:39], s[0:1], 64")
e("s_load_dwordx2 s[40:41], s[0:1], 96")
if PROF:
    e("v_mov_b32 v251, 0")
    e("s_memtime s[42:43]")
e(f"v_lshrrev_b32 {vT0}, 6, v0")
e("v_and_b32 v0, 63, v0")
e(f"v_readfirstlane_b32 {sW}, {vT0}")
e(f"v_lshlrev_b32 {vL16}, 4, {vLANE}")
e(f"v_mov_b32 {vZERO}, 0")
e(f"s_lshr_b32 s3, s2, 3")
e(f"s_and_b32 {sJ}, s3, 7")
e(f"s_lshr_b32 s3, s3, 3")
e(f"s_and_b32 {sG}, s2, 7")
e(f"s_lshl_b32 {sG}, {sG}, 2")
e(f"s_add_u32 {sG}, {sG}, s3")
e(f"s_lshr_b32 {sQ16}, {sJ}, 1")
e(f"s_and_b32 {sKIND}, {sJ}, 1")
e(f"s_mov_b32 {sSPIN}, 0")
e("s_mov_b32 s98, 0")
e("s_mov_b32 s99, -1")
vXO, vWQO = "v20", "v21"
e(f"v_lshrrev_b32 {vT0}, 3, {vLANE}")
e(f"v_and_b32 {vT1}, 7, {vLANE}")
e(f"v_xor_b32 {vT2}, {vT1}, {vT0}")
e(f"v_mul_u32_u24 {vT0}, 896, {vT0}")
e(f"v_lshl_add_u32 {vXO}, {vT2}, 4, {vT0}")
e(f"s_cmp_ge_u32 {sW}, 2")
e("s_cbranch_scc1 L_p1_w23a")
st0 = g.state()
e("s_waitcnt lgkmcnt(0)")
if PROF:
    e("v_writelane_b32 v251, s42, 0")
prof_n[0] = 1
PROF_NAMES.append("start")


def build_srds():
    srd(SRD_X, 16, 2048 * 896)
    srd(SRD_WS, 40, WS_BYTES)
    srd(SRD_DBG, 38, 256)


build_srds()
e(f"s_cmp_eq_u32 {sKIND}, 0")
e("s_cselect_b32 s48, s20, s22")
e("s_cselect_b32 s49, s21, s23")
e("s_and_b32 s49, s49, 0xffff")
e(f"s_mov_b32 s50, {448*56}")
e("s_mov_b32 s51, 0x20000")
e(f"s_lshl_b32 {sT[0]}, {sQ16}, 1")
e(f"s_add_u32 {sT[0]}, {sT[0]}, {sW}")
e(f"s_mul_i32 {sT[1]}, {sT[0]}, {XB}")
e(f"s_lshl_b32 {sT[2]}, {sG}, 3")
e(f"s_add_u32 {sT[2]}, {sT[2]}, {sT[0]}")
e(f"s_mul_i32 {sT[2]}, {sT[2]}, {8*896}")
e(f"s_add_u32 m0, {sT[1]}, {L_X}")
for i in range(7):
    dma(vXO, SRD_X, sT[2])
    if i < 6:
        e(f"s_add_u32 m0, m0, 1024")
        e(f"s_add_u32 {sT[2]}, {sT[2]}, 128")
e(f"s_mul_i32 {sT[2]}, {sW}, 12288")
e(f"s_add_u32 m0, {sT[2]}, {L_WKV}")
for grp in range(4):
    for i in range(4 if grp < 3 else 1):
        dma(vL16, SRD_WKV, sT[2], i * 1024)
    if grp < 3:
        e(f"s_add_u32 m0, m0, 4096")
        e(f"s_add_u32 {sT[2]}, {sT[2]}, 4096")
e(f"s_cmp_lg_u32 {sW}, 0")
e("s_cbranch_scc1 L_p1_b0")
stA = g.state()
e("v_mov_b32 v24, 0")
e("v_mov_b32 v25, 0")
e("v_mov_b32 v26, 0")
e("v_mov_b32 v27, 0")
e(f"ds_write_b128 {vZERO}, v[24:27] offset:{L_MISC}")
e(f"ds_write_b128 {vZERO}, v[24:27] offset:{L_MISC+16}")
e("s_cmp_lg_u32 s2, 0")
e("s_cbranch_scc1 L_p1_b0")
stB = g.state()
e("s_memrealtime s[42:43]")
e("s_waitcnt lgkmcnt(0)")
e("s_or_b32 s42, s42, 1")
e("v_mov_b32 v24, s42")
e("s_mov_b64 exec, 1")
e(f"buffer_store_dword v24, {vZERO}, {SRD_DBG}, 0 offen sc1")
e("s_mov_b64 exec, -1")
g.join([stA, stB, g.state()])
g.label("L_p1_b0")
g.barrier()
vXE, vXD, vWT, vST = "v22", "v23", "v24", "v25"
e(f"v_and_b32 {vT0}, 15, {vLANE}")
e(f"v_lshrrev_b32 {vT1}, 4, {vLANE}")
e(f"v_and_b32 {vT2}, 7, {vLANE}")
e(f"v_xor_b32 {vXE}, {vT1}, {vT2}")
e(f"v_lshlrev_b32 {vXE}, 4, {vXE}")
e(f"v_lshl_add_u32 {vXE}, {vT2}, 7, {vXE}")
e(f"v_lshrrev_b32 {vT2}, 3, {vT0}")
e(f"s_lshl_b32 {sT[0]}, {sQ16}, 1")
e(f"v_add_u32 {vT2}, {sT[0]}, {vT2}")
e(f"v_mul_u32_u24 {vT2}, {XB}, {vT2}")
e(f"v_add_u32 {vXE}, {vXE}, {vT2}")
e(f"v_add_u32 {vXE}, {L_X}, {vXE}")
e(f"v_xor_b32 {vXD}, 64, {vXE}")
e(f"v_lshrrev_b32 {vT2}, 2, {vT0}")
e(f"v_lshl_add_u32 {vT2}, {vT1}, 3, {vT2}")
e(f"v_mul_u32_u24 {vT2}, 56, {vT2}")
e(f"v_and_b32 {vT0}, 3, {vLANE}")
e(f"v_lshl_add_u32 {vT2}, {vT0}, 3, {vT2}")
e(f"s_lshl_b32 {sT[0]}, {sW}, 5")
e(f"s_add_u32 {sT[0]}, {sT[0]}, {L_WKV}")
e(f"v_add_u32 {vWT}, {sT[0]}, {vT2}")
for i in range(4):
    e(f"v_mov_b32 v{140+i}, 0x3f803f80")
e(f"s_cmp_lg_u32 {sW}, 0")
e("s_cbranch_scc1 L_p1_nn")
stA = g.state()
g.label("L_p1_npoll")
e(f"buffer_load_dword v26, {vZERO}, {SRD_DBG}, 0 offen sc1")
spin_guard("L_p1_ngot")
e("s_waitcnt vmcnt(0)")
e(f"v_readfirstlane_b32 {sNONCE}, v26")
e(f"s_cmp_eq_u32 {sNONCE}, 0")
e("s_cbranch_scc1 L_p1_npoll")
g.label("L_p1_ngot")
e("s_waitcnt vmcnt(0)")
e(f"ds_write_b32 {vZERO}, v26 offset:{L_MISC}")
g.join([stA, g.state()])
g.label("L_p1_nn")
e("s_waitcnt vmcnt(0)")
g.barrier()
stamp("B1")
XF, WF = 28, 84
ACC16, CS16, ONES = vr(144, 4), vr(148, 4), vr(140, 4)
for t in range(14):
    e(f"ds_read_b128 {vr(XF+4*t,4)}, {vXE if t%2==0 else vXD} offset:{(t>>1)*1024}")
    for h in range(2):
        e(f"ds_read_b64_tr_b16 {vr(WF+4*t+2*h,2)}, {vWT} offset:{t*1792+h*224}")
e(f"s_cmp_lg_u32 {sKIND}, 0")
e("s_cbranch_scc1 L_p1_vk")
stK = g.state()
for t in range(14):
    mfma16(ACC16, vr(WF + 4 * t, 4), vr(XF + 4 * t, 4), ACC16 if t else "0")
    mfma16(CS16, vr(WF + 4 * t, 4), ONES, CS16 if t else "0")
e(f"v_and_b32 {vT0}, 15, {vLANE}")
e(f"s_lshl_b32 {sT[0]}, {sQ16}, 7")
e(f"s_add_u32 {sT[0]}, {sT[0]}, {L_STATS}")
e(f"v_lshl_add_u32 {vST}, {vT0}, 3, {sT[0]}")
e(f"s_and_b32 {sT[1]}, {sQ16}, 1")
e(f"s_lshl_b32 {sT[1]}, {sT[1]}, 8")
e(f"s_lshl_b32 {sT[2]}, {sW}, 10")
e(f"s_add_u32 {sT[1]}, {sT[1]}, {sT[2]}")
g.barrier()
e(f"ds_read_b64 v[28:29], {vST}")
e(f"s_lshl_b32 {sT[3]}, {sW}, 16")
e(f"s_mul_i32 {sT[3]}, {sT[3]}, 0xffff")
e(f"s_mov_b32 vcc_lo, 0")
e(f"s_mov_b32 vcc_hi, {sT[3]}")
for r in range(4):
    e(f"v_fma_f32 v{144+r}, -v28, v{148+r}, v{144+r}")
for r in range(4):
    e(f"v_mul_f32 v{144+r}, v29, v{144+r}")
for r in range(4):
    e(f"v_cndmask_b32 v{144+r}, v{144+r}, {vZERO}, vcc")
e("v_cvt_pk_bf16_f32 v30, v144, v145")
e("v_cvt_pk_bf16_f32 v31, v146, v147")
e("v_max3_f32 v32, abs(v144), abs(v145), abs(v146)")
e("v_max_f32 v32, v32, abs(v147)")
e("s_branch L_p1_kvst")
stK2 = g.state()
g.set_state(stK)
g.label("L_p1_vk")
for t in range(14):
    mfma16(ACC16, vr(XF + 4 * t, 4), vr(WF + 4 * t, 4), ACC16 if t else "0")
    mfma16(CS16, ONES, vr(WF + 4 * t, 4), CS16 if t else "0")
e(f"v_lshrrev_b32 {vT0}, 4, {vLANE}")
e(f"s_lshl_b32 {sT[0]}, {sQ16}, 7")
e(f"s_add_u32 {sT[0]}, {sT[0]}, {L_STATS}")
e(f"v_lshl_add_u32 {vST}, {vT0}, 5, {sT[0]}")
e(f"s_and_b32 {sT[1]}, {sQ16}, 1")
e(f"s_lshl_b32 {sT[1]}, {sT[1]}, 10")
e(f"s_lshl_b32 {sT[2]}, {sW}, 8")
e(f"s_add_u32 {sT[1]}, {sT[1]}, {sT[2]}")
e(f"s_add_u32 {sT[1]}, {sT[1]}, 2048")
g.barrier()
e(f"ds_read_b128 v[32:35], {vST}")
e(f"ds_read_b128 v[36:39], {vST} offset:16")
e(f"v_and_b32 {vT0}, 15, {vLANE}")
e(f"s_lshl_b32 {sT[3]}, {sW}, 4")
e(f"v_add_u32 {vT0}, {sT[3]}, {vT0}")
for r in range(4):
    e(f"v_fma_f32 v{144+r}, -v{32+2*r}, v{148+r}, v{144+r}")
for r in range(4):
    e(f"v_mul_f32 v{144+r}, v{33+2*r}, v{144+r}")
e("v_cvt_pk_bf16_f32 v30, v144, v145")
e("v_cvt_pk_bf16_f32 v31, v146, v147")
e(f"v_cmp_lt_u32 vcc, 27, {vT0}")
e(f"v_cmp_eq_u32 s[72:73], 28, {vT0}")
e(f"v_cndmask_b32 v30, v30, {vZERO}, vcc")
e(f"v_cndmask_b32 v31, v31, {vZERO}, vcc")
e(f"v_cndmask_b32 v30, v30, v140, s[72:73]")
e(f"v_cndmask_b32 v31, v31, v140, s[72:73]")
e("v_mov_b32 v32, 0")
g.join([stK2, g.state()])
g.label("L_p1_kvst")
e(f"v_and_b32 {vT0}, 15, {vLANE}")
e(f"v_bfe_u32 {vT1}, {vLANE}, 4, 1")
e(f"v_lshl_add_u32 {vT0}, {vT1}, 5, {vT0}")
e(f"v_lshlrev_b32 {vT0}, 4, {vT0}")
e(f"v_lshrrev_b32 {vT1}, 5, {vLANE}")
e(f"v_lshl_add_u32 {vT0}, {vT1}, 3, {vT0}")
e(f"s_lshl_b32 {sT[2]}, {sG}, 1")
e(f"s_lshr_b32 {sT[3]}, {sQ16}, 1")
e(f"s_add_u32 {sT[2]}, {sT[2]}, {sT[3]}")
e(f"s_lshl_b32 {sT[2]}, {sT[2]}, 12")
e(f"s_add_u32 {sT[1]}, {sT[1]}, {sT[2]}")
e(f"s_add_u32 {sT[1]}, {sT[1]}, {WS_KV}")
e(f"buffer_store_dwordx2 v[30:31], {vT0}, {SRD_WS}, {sT[1]} offen sc1", tag="kvst")
stamp("kvstore")
wave_max_u32("v32", sT[5], sT[4])
e(f"v_mov_b32 v32, {sT[4]}")
e(f"ds_max_u32 {vZERO}, v32 offset:{L_MISC+16}")
e("s_branch L_p1_pp")
stW01 = g.state()

g.set_state(st0)
g.label("L_p1_w23a")
e("s_getpc_b64 s[64:65]")
g.label("L_pcref")
e(f"s_and_b32 {sT[0]}, {sW}, 1")
e(f"s_lshl_b32 {sT[0]}, {sT[0]}, 13")
e(f"v_lshl_add_u32 {vT0}, {vLANE}, 7, {sT[0]}")
e(f"v_min_u32 {vT1}, CODE_SPAN, {vT0}".replace("CODE_SPAN", "0x11111"))
e(f"global_load_dword v28, {vT1}, s[64:65]", tag="warm")
e(f"v_add_u32 {vT0}, 0x4000, {vT0}")
e(f"v_min_u32 {vT1}, CODE_SPAN, {vT0}".replace("CODE_SPAN", "0x11111"))
e(f"global_load_dword v29, {vT1}, s[64:65]", tag="warm")
e(f"v_add_u32 {vT0}, 0x4000, {vT0}")
e(f"v_min_u32 {vT1}, 0x11111, {vT0}")
e(f"global_load_dword v30, {vT1}, s[64:65]", tag="warm")
e(f"v_lshrrev_b32 {vT0}, 3, {vLANE}")
e(f"v_bfe_u32 {vT1}, {vLANE}, 4, 1")
e(f"v_lshl_add_u32 {vT1}, {vT1}, 2, {vLANE}")
e(f"v_and_b32 {vT1}, 7, {vT1}")
e(f"v_mul_u32_u24 {vT0}, 896, {vT0}")
e(f"v_lshl_add_u32 {vWQO}, {vT1}, 4, {vT0}")
e("s_waitcnt lgkmcnt(0)")
if PROF:
    e("v_writelane_b32 v251, s42, 0")
build_srds()
srd(SRD_WQ, 18, 448 * 896)
g.barrier()
e(f"s_sub_u32 {sT[3]}, {sW}, 2")
e(f"s_mul_i32 {sT[0]}, {sT[3]}, 3")
e(f"s_lshl_b32 {sT[1]}, {sQ16}, 1")
e(f"s_add_u32 {sT[0]}, {sT[0]}, {sT[1]}")
e(f"s_add_u32 {sT[0]}, {sT[0]}, 2")
for m in range(3):
    e(f"s_and_b32 {sT[0]}, {sT[0]}, 7")
    e(f"s_mul_i32 m0, {sT[0]}, {XB}")
    e(f"s_add_u32 m0, m0, {L_X}")
    e(f"s_lshl_b32 {sT[2]}, {sG}, 3")
    e(f"s_add_u32 {sT[2]}, {sT[2]}, {sT[0]}")
    e(f"s_mul_i32 {sT[2]}, {sT[2]}, {8*896}")
    for i in range(7):
        dma(vXO, SRD_X, sT[2])
        if i < 6:
            e(f"s_add_u32 m0, m0, 1024")
            e(f"s_add_u32 {sT[2]}, {sT[2]}, 128")
    e(f"s_add_u32 {sT[0]}, {sT[0]}, 1")
e(f"s_mul_i32 {sT[2]}, {sT[3]}, {28*8*896}")
e(f"s_mul_i32 {sT[1]}, {sJ}, 112")
e(f"s_add_u32 {sT[2]}, {sT[2]}, {sT[1]}")
e(f"s_mul_i32 {sT[1]}, {sT[3]}, {28*1024}")
e(f"s_add_u32 m0, {sT[1]}, {L_WQ}")
for b in range(28):
    dma(vWQO, SRD_WQ, sT[2], tag="wq")
    if b < 27:
        e(f"s_add_u32 m0, m0, 1024")
        e(f"s_add_u32 {sT[2]}, {sT[2]}, {8*896}")
e(f"s_lshl_b32 {sT[0]}, {sQ16}, 1")
e(f"s_add_u32 {sT[0]}, {sT[0]}, {sT[3]}")
e(f"s_mul_i32 {sT[1]}, {sT[0]}, {XB}")
e(f"s_add_u32 {sT[1]}, {sT[1]}, {L_X}")
e(f"v_add_u32 v22, {sT[1]}, {vL16}")
e(f"s_lshl_b32 {sT[0]}, {sT[0]}, 6")
e(f"s_add_u32 {sT[0]}, {sT[0]}, {L_STATS}")
e(f"v_and_b32 v23, 0x38, {vLANE}")
e(f"v_add_u32 v23, {sT[0]}, v23")
g.barrier()
stamp_k = prof_n[0]
prof_n[0] = 1
del PROF_NAMES[1:]
stamp("B1")
row_stats("v22", 32, "v23")
g.barrier()
stamp("kvstore")
g.join([stW01, g.state()])

g.label("L_p1_pp")
PG, PPK, PV = 180, 212, 228
sPIT, sLO0, sHI0, sLO1, sHI1, sD0, sDK, sDC, sJOB = sT[6:15]
e(f"s_lshl_b32 {sPIDX}, s2, 2")
e(f"s_add_u32 {sPIDX}, {sPIDX}, {sW}")
e(f"s_mov_b32 {sJOB}, 0")
e(f"s_cmp_lt_u32 {sPIDX}, 448")
e("s_cbranch_scc1 L_pp_w2")
e(f"s_cmp_lt_u32 {sPIDX}, 840")
e("s_cbranch_scc1 L_pp_w1")
srd(SRD_PP, 24, 448 * 896)
e(f"s_mov_b32 {sPIT}, 896")
e(f"s_sub_u32 {sT[0]}, {sPIDX}, 840")
e(f"s_lshr_b32 {sT[1]}, {sT[0]}, 4")
e(f"s_and_b32 {sT[2]}, {sT[0]}, 15")
e(f"s_mul_i32 {sLO0}, {sT[2]}, {28*896}")
e(f"s_mul_i32 {sT[3]}, {sT[1]}, 112")
e(f"s_add_u32 {sLO0}, {sLO0}, {sT[3]}")
e(f"s_lshl_b32 {sD0}, {sT[0]}, 12")
e(f"s_add_u32 {sD0}, {sD0}, {WS_WOF}")
e(f"s_mov_b32 {sDK}, 2048")
e(f"s_mov_b32 {sDC}, 1024")
e(f"s_cmp_lt_u32 {sPIDX}, 968")
e(f"s_cselect_b32 {sJOB}, 0, 1")
e("s_branch L_pp_reg")
g.label("L_pp_w2")
srd(SRD_PP, 32, 1792 * 896)
e(f"s_mov_b32 {sPIT}, 896")
e(f"s_mul_i32 {sT[1]}, {sPIDX}, 1171")
e(f"s_lshr_b32 {sT[1]}, {sT[1]}, 16")
e(f"s_mul_i32 {sT[2]}, {sT[1]}, 56")
e(f"s_sub_u32 {sT[2]}, {sPIDX}, {sT[2]}")
e(f"s_mul_i32 {sLO0}, {sT[2]}, {32*896}")
e(f"s_mul_i32 {sT[3]}, {sT[1]}, 112")
e(f"s_add_u32 {sLO0}, {sLO0}, {sT[3]}")
e(f"s_lshl_b32 {sD0}, {sPIDX}, 12")
e(f"s_add_u32 {sD0}, {sD0}, {WS_W2F}")
e(f"s_mov_b32 {sDK}, 2048")
e(f"s_mov_b32 {sDC}, 1024")
g.label("L_pp_reg")
e(f"s_add_u32 {sHI0}, {sLO0}, {8*896}")
e(f"s_add_u32 {sLO1}, {sLO0}, {16*896}")
e(f"s_add_u32 {sHI1}, {sLO0}, {24*896}")
e("s_branch L_pp_go")
g.label("L_pp_w1")
srd(SRD_PP, 28, 448 * 3584)
e(f"s_mov_b32 {sPIT}, 3584")
e(f"s_sub_u32 {sT[0]}, {sPIDX}, 448")
e(f"s_mul_i32 {sT[1]}, {sT[0]}, 4682")
e(f"s_lshr_b32 {sT[1]}, {sT[1]}, 16")
e(f"s_mul_i32 {sT[2]}, {sT[1]}, 14")
e(f"s_sub_u32 {sT[2]}, {sT[0]}, {sT[2]}")
e(f"s_lshl_b32 {sT[2]}, {sT[2]}, 1")
e(f"s_mul_i32 {sD0}, {sT[1]}, 56")
e(f"s_add_u32 {sD0}, {sD0}, {sT[2]}")
e(f"s_lshl_b32 {sD0}, {sD0}, 10")
e(f"s_add_u32 {sD0}, {sD0}, {WS_W1F}")
e(f"s_mov_b32 {sDK}, 1024")
e(f"s_mov_b32 {sDC}, {28*1024}")
e(f"s_lshl_b32 {sT[1]}, {sT[1]}, 7")
for (lo, hi) in ((sLO0, sHI0), (sLO1, sHI1)):
    e(f"s_mul_i32 {sT[3]}, {sT[2]}, 9363")
    e(f"s_lshr_b32 {sT[3]}, {sT[3]}, 16")
    e(f"s_mul_i32 {sT[3]}, {sT[3]}, 7")
    e(f"s_sub_u32 {sT[3]}, {sT[2]}, {sT[3]}")
    e(f"s_lshl_b32 {lo}, {sT[2]}, 4")
    e(f"s_cmp_gt_u32 {sT[3]}, 3")
    e(f"s_cselect_b32 {sT[4]}, 8, 0")
    e(f"s_sub_u32 {lo}, {lo}, {sT[4]}")
    e(f"s_cmp_eq_u32 {sT[3]}, 3")
    e(f"s_cselect_b32 {sT[4]}, 56, 8")
    e(f"s_add_u32 {hi}, {lo}, {sT[4]}")
    e(f"s_mul_i32 {lo}, {lo}, 3584")
    e(f"s_mul_i32 {hi}, {hi}, 3584")
    e(f"s_add_u32 {lo}, {lo}, {sT[1]}")
    e(f"s_add_u32 {hi}, {hi}, {sT[1]}")
    e(f"s_add_u32 {sT[2]}, {sT[2]}, 1")
g.label("L_pp_go")
e(f"v_lshrrev_b32 {vT0}, 5, {vLANE}")
e(f"v_lshlrev_b32 {vT0}, 2, {vT0}")
e(f"v_mul_lo_u32 {vT0}, {vT0}, {sPIT}")
e(f"v_and_b32 {vT1}, 31, {vLANE}")
e(f"v_lshl_add_u32 v{PV}, {vT1}, 1, {vT0}")
for s in range(1, 4):
    e(f"v_add_u32 v{PV+s}, {sPIT}, v{PV+s-1}")
e(f"s_cmp_lg_u32 {sJOB}, 0")
e("s_cbranch_scc1 L_pp_rm")
stA = g.state()
for kk, (lo, hi) in enumerate(((sLO0, sHI0), (sLO1, sHI1))):
    for ct in range(2):
        for hh, so in enumerate((lo, hi)):
            for s in range(4):
                e(f"buffer_load_ushort v{PG+(kk*2+ct)*8+hh*4+s}, v{PV+s}, {SRD_PP}, {so} offen{' offset:64' if ct else ''}", tag="pp")
e("s_branch L_pp_done")
stA2 = g.state()
g.set_state(stA)
g.label("L_pp_rm")
e(f"s_sub_u32 {sT[0]}, {sPIDX}, 968")
e(f"s_lshr_b32 {sT[1]}, {sT[0]}, 1")
e(f"s_mul_i32 {sT[1]}, {sT[1]}, 28")
e(f"s_and_b32 {sT[2]}, {sT[0]}, 1")
e(f"s_lshl_b32 {sT[2]}, {sT[2]}, 4")
e(f"s_add_u32 {sT[1]}, {sT[1]}, {sT[2]}")
e(f"v_bfe_u32 {vT0}, {vLANE}, 2, 2")
e(f"v_bfe_u32 {vT1}, {vLANE}, 4, 1")
e(f"v_lshl_add_u32 {vT0}, {vT1}, 3, {vT0}")
e(f"v_lshrrev_b32 {vT1}, 5, {vLANE}")
e(f"v_lshl_add_u32 {vT0}, {vT1}, 2, {vT0}")
e(f"v_add_u32 {vT0}, {sT[1]}, {vT0}")
e(f"v_mul_u32_u24 {vT0}, 896, {vT0}")
e(f"v_and_b32 {vT1}, 3, {vLANE}")
e(f"v_lshl_add_u32 {vT0}, {vT1}, 4, {vT0}")
RMB = 160
for i in range(14):
    e(f"buffer_load_dwordx4 {vr(RMB+4*i,4)}, {vT0}, {SRD_PP}, 0 offen offset:{i*64}", tag="pp")
g.join([stA2, g.state()])
g.label("L_pp_done")
srd(SRD_B, 30, 1792 * 2)
e(f"s_mul_i32 {sT[0]}, {sJ}, 448")
e(f"s_lshl_b32 {sT[1]}, {sW}, 7")
e(f"s_add_u32 {sT[0]}, {sT[0]}, {sT[1]}")
e(f"v_lshlrev_b32 {vT0}, 1, {vLANE}")
e(f"v_add_u32 {vT1}, {sT[0]}, {vT0}")
e(f"buffer_load_ushort v232, {vT1}, {SRD_B}, 0 offen")
e(f"s_mul_i32 {sT[0]}, {sJ}, 112")
e(f"v_add_u32 {vT1}, {sT[0]}, {vT0}")
srd(SRD_OUT, 34, 448 * 2)
e(f"buffer_load_ushort v233, {vT1}, {SRD_OUT}, 0 offen")
e(f"s_cmp_ge_u32 {sW}, 2")
e("s_cbranch_scc1 L_p1_w23b")
stA = g.state()
g.wait_tag("kvst")
last_wave_signal_begin(4, "v32")
e(f"ds_read_b32 v34, {vZERO} offset:{L_MISC}")
e(f"ds_read_b32 v35, {vZERO} offset:{L_MISC+16}")
e(f"v_readfirstlane_b32 {sT[0]}, v32")
e(f"s_cmp_lg_u32 {sT[0]}, 1")
e("s_cbranch_scc1 L_p1_b3")
stB = g.state()
e(f"s_and_b32 {sT[0]}, s2, 63")
e(f"s_lshl_b32 {sT[0]}, {sT[0]}, 7")
e(f"s_lshr_b32 {sT[1]}, s2, 6")
e(f"s_lshl_b32 {sT[1]}, {sT[1]}, 3")
e(f"s_add_u32 {sT[0]}, {sT[0]}, {sT[1]}")
e("s_mov_b64 exec, 1")
e(f"buffer_store_dwordx2 v[34:35], {vZERO}, {SRD_WS}, {sT[0]} offen sc1")
e("s_mov_b64 exec, -1")
e("s_branch L_p1_b3")
stC = g.state()
g.set_state(stA)
g.label("L_p1_w23b")
g.wait_tag("wq")
g.join([stB, stC, g.state()])
g.label("L_p1_b3")
stamp("preB3")
g.barrier()
stamp("B3")
e(f"s_mul_i32 {sT[1]}, {sW}, {2*XB}")
e(f"s_add_u32 {sT[1]}, {sT[1]}, {L_X}")
e(f"v_add_u32 v22, {sT[1]}, {vL16}")
e(f"v_add_u32 v24, {XB}, v22")
e(f"s_lshl_b32 {sT[0]}, {sW}, 7")
e(f"s_add_u32 {sT[0]}, {sT[0]}, {L_STATS}")
e(f"v_and_b32 v23, 0x38, {vLANE}")
e(f"v_add_u32 v23, {sT[0]}, v23")
e(f"v_add_u32 v25, 64, v23")
row_stats("v22", 32, "v23")
row_stats("v24", 68, "v25")
stamp("stats")
vXA = [f"v{26+u}" for u in range(4)]
vWA, vWB = "v30", "v31"
sRT, sHD = sT[0], sT[1]
e(f"s_lshr_b32 {sRT}, {sW}, 1")
e(f"s_and_b32 {sHD}, {sW}, 1")
e(f"v_and_b32 {vT0}, 7, {vLANE}")
e(f"v_lshrrev_b32 {vT1}, 5, {vLANE}")
e(f"v_xor_b32 {vT2}, {vT0}, {vT1}")
e(f"s_lshl_b32 {sT[2]}, {sRT}, 2")
e(f"v_xor_b32 {vT2}, {sT[2]}, {vT2}")
e(f"v_lshlrev_b32 {vT2}, 4, {vT2}")
e(f"v_lshl_add_u32 {vT2}, {vT0}, 7, {vT2}")
e(f"v_bfe_u32 {vT0}, {vLANE}, 3, 2")
e(f"v_add_u32 {vT0}, {sT[2]}, {vT0}")
e(f"v_mul_u32_u24 {vT0}, {XB}, {vT0}")
e(f"v_add_u32 {vXA[0]}, {vT0}, {vT2}")
for u in range(1, 4):
    e(f"v_xor_b32 {vXA[u]}, {32*u}, {vXA[0]}")
e(f"v_bfe_u32 {vT0}, {vLANE}, 2, 2")
e(f"v_lshl_add_u32 {vT1}, {vT1}, 3, {vT0}")
e(f"v_lshlrev_b32 {vT1}, 7, {vT1}")
e(f"v_lshrrev_b32 {vT0}, 1, {vT0}")
e(f"v_lshlrev_b32 {vT0}, 6, {vT0}")
e(f"v_and_b32 {vT2}, 3, {vLANE}")
e(f"v_lshl_add_u32 {vT0}, {vT2}, 3, {vT0}")
e(f"v_bfe_u32 {vT2}, {vLANE}, 4, 1")
e(f"v_lshl_add_u32 {vT0}, {vT2}, 5, {vT0}")
e(f"s_mul_i32 {sT[2]}, {sHD}, 56")
e(f"v_add_u32 {vT0}, {sT[2]}, {vT0}")
e(f"v_and_b32 {vT0}, 127, {vT0}")
e(f"v_add_u32 {vT0}, {vT0}, {vT1}")
e(f"s_lshl_b32 {sT[2]}, {sRT}, 12")
e(f"s_add_u32 {sT[3]}, {sT[2]}, {L_WQ}")
e(f"v_add_u32 {vWA}, {sT[3]}, {vT0}")
e(f"s_sub_u32 {sT[3]}, {L_WQ+4096}, {sT[2]}")
e(f"v_add_u32 {vWB}, {sT[3]}, {vT0}")
QACC, QCS, QX_, QW_ = 104, 120, 32, 64
for i in range(4):
    e(f"v_mov_b32 v{140+i}, 0x3f803f80")


def q_loads(t):
    seg, u = t >> 2, t & 3
    e(f"ds_read_b128 {vr(QX_+4*(t%8),4)}, {vXA[u]} offset:{L_X+seg*1024}")
    for h in range(2):
        e(f"ds_read_b64_tr_b16 {vr(QW_+4*(t%8)+2*h,2)}, {vWA if u<2 else vWB} offset:{seg*8192+(u&1)*2048+h*512}")


for t in range(4):
    q_loads(t)
first_cs = True
for t in range(28):
    if t + 4 < 28:
        q_loads(t + 4)
    mfma32(vr(QACC, 16), vr(QW_ + 4 * (t % 8), 4), vr(QX_ + 4 * (t % 8), 4), vr(QACC, 16) if t else "0")
    if (t & 3) < 2:
        mfma32(vr(QCS, 16), vr(QW_ + 4 * (t % 8), 4), ONES, "0" if first_cs else vr(QCS, 16))
        first_cs = False
e(f"s_mul_i32 {sT[2]}, {sJ}, 112")
e(f"s_lshl_b32 {sT[3]}, {sHD}, 6")
e(f"s_add_u32 {sT[2]}, {sT[2]}, {sT[3]}")
e(f"s_lshl_b32 {sT[3]}, {sRT}, 5")
e(f"s_add_u32 {sC}, {sT[2]}, {sT[3]}")
e(f"v_lshrrev_b32 {vT1}, 5, {vLANE}")
e(f"v_lshlrev_b32 {vT1}, 3, {vT1}")
e(f"v_and_b32 {vT0}, 7, {vLANE}")
e(f"v_lshl_add_u32 {vT1}, {vT0}, 7, {vT1}")
e(f"v_bfe_u32 {vT2}, {vLANE}, 3, 2")
e(f"v_mul_u32_u24 {vT2}, {XB}, {vT2}")
e(f"v_add_u32 {vT1}, {vT1}, {vT2}")
for pc in range(2):
    e(f"s_lshr_b32 {sT[2]}, {sC}, 4")
    if pc:
        e(f"s_add_u32 {sT[2]}, {sT[2]}, 1")
    e(f"s_and_b32 {sT[3]}, {sT[2]}, 7")
    e(f"s_lshr_b32 {sT[2]}, {sT[2]}, 3")
    e(f"s_lshl_b32 {sT[2]}, {sT[2]}, 10")
    e(f"v_xor_b32 {vT2}, {sT[3]}, {vT0}")
    e(f"v_lshl_add_u32 {vT2}, {vT2}, 4, {vT1}")
    e(f"v_add_u32 {vT2}, {sT[2]}, {vT2}")
    for rt in range(2):
        e(f"ds_read_b64 {vr(XRES+4*rt+2*pc,2)}, {vT2} offset:{L_X+rt*4*XB}")
e(f"s_lshl_b32 {sT[2]}, {sW}, 12")
e(f"s_add_u32 {sT[2]}, {sT[2]}, {L_CSX}")
e(f"v_add_u32 {vT3}, {sT[2]}, {vL16}")
for i in range(4):
    e(f"ds_write_b128 {vT3}, {vr(QCS+4*i,4)} offset:{i*1024}")
e(f"v_lshlrev_b32 v232, 16, v232")
e(f"v_lshlrev_b32 v233, 16, v233")
e(f"v_lshlrev_b32 {vT0}, 2, {vLANE}")
e(f"s_lshl_b32 {sT[2]}, {sW}, 8")
e(f"v_add_u32 {vT1}, {sT[2]}, {vT0}")
e(f"ds_write_b32 {vT1}, v232 offset:{L_B1}")
e(f"ds_write_b32 {vT0}, v233 offset:{L_B2}")
stamp("qgemm")
g.barrier()
stamp("B4")
vF1 = "v22"
e(f"v_lshlrev_b32 {vF1}, 7, {vLANE}")
e(f"s_cmp_lg_u32 {sW}, 0")
e("s_cbranch_scc1 L_p1_np")
stA = g.state()
ld4("v[96:99]", vF1, "0")
ld4("v[100:103]", vF1, "0", 16)
g.join([stA, g.state()])
g.label("L_p1_np")
e(f"s_xor_b32 {sT[2]}, {sW}, 2")
e(f"s_lshl_b32 {sT[2]}, {sT[2]}, 12")
e(f"s_add_u32 {sT[2]}, {sT[2]}, {L_CSX}")
e(f"v_add_u32 {vT3}, {sT[2]}, {vL16}")
CSP = 32
for i in range(4):
    e(f"ds_read_b128 {vr(CSP+4*i,4)}, {vT3} offset:{i*1024}")
e(f"v_and_b32 {vT0}, 31, {vLANE}")
e(f"s_lshl_b32 {sT[2]}, {sRT}, 8")
e(f"s_add_u32 {sT[2]}, {sT[2]}, {L_STATS}")
e(f"v_lshl_add_u32 {vT0}, {vT0}, 3, {sT[2]}")
e(f"ds_read_b64 v[48:49], {vT0}")
for r in range(16):
    e(f"v_add_f32 v{QCS+r}, v{QCS+r}, v{CSP+r}")
QSCALE = 28 ** -0.5 * 1.4426950408889634
e(f"v_mul_f32 v49, {f2u(QSCALE):#x}, v49")
for r in range(16):
    e(f"v_fma_f32 v{QACC+r}, -v48, v{QCS+r}, v{QACC+r}")
for r in range(16):
    e(f"v_mul_f32 v{QACC+r}, v49, v{QACC+r}")
for r in range(12, 16):
    e(f"v_cndmask_b32 v{QACC+r}, v{QACC+r}, {vZERO}, {sMASKH}")
for r in range(8):
    e(f"v_cvt_pk_bf16_f32 v{50+r}, v{QACC+2*r}, v{QACC+2*r+1}")
e(f"s_lshl_b32 {sT[2]}, {sW}, 11")
e(f"v_add_u32 {vT0}, {sT[2]}, {vL16}")
e(f"ds_write_b128 {vT0}, v[50:53] offset:{L_QX}")
e(f"ds_write_b128 {vT0}, v[54:57] offset:{L_QX+1024}")
e(f"v_add_f32 v58, abs(v{QACC}), abs(v{QACC+1})")
e(f"v_add_f32 v59, abs(v{QACC+2}), abs(v{QACC+3})")
for r in range(4, 16, 2):
    e(f"v_add_f32 v58, v58, abs(v{QACC+r})")
    e(f"v_add_f32 v59, v59, abs(v{QACC+r+1})")
e("v_add_f32 v58, v58, v59")
e("v_mov_b32 v59, v58")
e("v_permlane32_swap_b32 v58, v59")
e("v_add_f32 v58, v58, v59")
wave_max_u32("v58", sT[3], sT[2], rows=2)
e(f"v_mov_b32 v58, {sT[2]}")
e(f"s_lshl_b32 {sT[2]}, {sW}, 2")
e(f"v_mov_b32 {vT0}, {sT[2]}")
e(f"ds_write_b32 {vT0}, v58 offset:{L_MISC+32}")
e(f"s_cmp_lg_u32 {sJOB}, 0")
e("s_cbranch_scc1 L_pp_rm2")
stA = g.state()
for i in range(16):
    e(f"v_lshl_or_b32 v{PPK+i}, v{PG+2*i+1}, 16, v{PG+2*i}")
e(f"s_add_u32 {sT[2]}, {sD0}, {sDC}")
e(f"s_add_u32 {sT[3]}, {sD0}, {sDK}")
e(f"s_add_u32 {sT[4]}, {sT[3]}, {sDC}")
for i, so in enumerate((sD0, sT[2], sT[3], sT[4])):
    st4(vr(PPK + 4 * i, 4), vL16, so, tag="ppst")
e("s_branch L_pp_done2")
stA2 = g.state()
g.set_state(stA)
g.label("L_pp_rm2")
e(f"v_mov_b32 v60, 0x3f803f80")
for i in range(56):
    a = "v61" if i % 2 == 0 else "v62"
    e(f"v_dot2_f32_bf16 {a}, v{RMB+i}, v60, {a if i >= 2 else '0'}")
e("s_nop 2")
e("v_add_f32 v61, v61, v62")
for m in ("quad_perm:[1,0,3,2]", "quad_perm:[2,3,0,1]"):
    e(f"v_add_f32_dpp v61, v61, v61 {m} row_mask:0xf bank_mask:0xf")
e(f"v_mul_f32 v61, {f2u(1/448):#x}, v61")
e("v_cvt_pk_bf16_f32 v61, v61, v61")
e(f"v_lshrrev_b32 {vT0}, 2, {vLANE}")
e(f"v_lshlrev_b32 {vT0}, 1, {vT0}")
e(f"s_sub_u32 {sT[2]}, {sPIDX}, 968")
e(f"s_lshl_b32 {sT[2]}, {sT[2]}, 11")
e(f"s_add_u32 {sT[2]}, {sT[2]}, {WS_RM}")
e(f"s_cmp_ge_u32 {sPIDX}, 1000")
e("s_cbranch_scc1 L_pp_done2")
stB = g.state()
e("s_mov_b32 s72, 0x11111111")
e("s_mov_b32 s73, 0x11111111")
e("s_mov_b64 exec, s[72:73]")
e(f"buffer_store_short v61, {vT0}, {SRD_WS}, {sT[2]} offen sc1", tag="ppst")
e("s_mov_b64 exec, -1")
g.join([stA2, stB, g.state()])
g.label("L_pp_done2")
sCT, sQH = sT[1], sT[0]
e(f"s_lshl_b32 {sKV}, {sW}, 16")
e(f"s_add_u32 {sKV}, {sKV}, {WS_KV}")
e(f"s_lshl_b32 {sT[2]}, {sG}, 16")
e(f"s_add_u32 {sT[3]}, {sT[2]}, {WS_OF}")
e(f"s_lshl_b32 {sOFW}, {sRT}, 15")
e(f"s_lshl_b32 {sT[4]}, {sJ}, 12")
e(f"s_add_u32 {sOFW}, {sOFW}, {sT[4]}")
e(f"s_lshl_b32 {sT[4]}, {sHD}, 11")
e(f"s_add_u32 {sOFW}, {sOFW}, {sT[4]}")
e(f"s_add_u32 {sOFW}, {sOFW}, {sT[3]}")
e(f"s_lshl_b32 {sOFR}, {sW}, 13")
e(f"s_add_u32 {sOFR}, {sOFR}, {sT[3]}")
e(f"s_add_u32 {sT[3]}, {sT[2]}, {WS_HF}")
e(f"s_lshl_b32 {sT[4]}, {sCT}, 1")
e(f"s_add_u32 {sT[4]}, {sT[4]}, {sQH}")
e(f"s_lshl_b32 {sT[5]}, {sKIND}, 12")
e(f"s_lshl_b32 {sT[15]}, {sKIND}, 9")
e(f"s_cmp_eq_u32 {sT[4]}, 3")
e(f"s_cselect_b32 {sT[5]}, {sT[15]}, {sT[5]}")
e(f"s_lshl_b32 {sT[4]}, {sT[4]}, 10")
e(f"s_add_u32 {sHFW}, {sT[4]}, {sT[5]}")
e(f"s_mul_i32 {sT[4]}, {sQ16}, 7168")
e(f"s_add_u32 {sHFW}, {sHFW}, {sT[4]}")
e(f"s_add_u32 {sHFW}, {sHFW}, {sT[3]}")
e(f"s_mul_i32 {sHFR}, {sCT}, {28*1024}")
e(f"s_mul_i32 {sT[4]}, {sQH}, {14*1024}")
e(f"s_add_u32 {sHFR}, {sHFR}, {sT[4]}")
e(f"s_add_u32 {sHFR}, {sHFR}, {sT[3]}")
e(f"s_mul_i32 {sT[3]}, {sG}, {224*1024}")
e(f"s_add_u32 {sT[3]}, {sT[3]}, {WS_HID}")
e(f"s_mul_i32 {sHIDW}, {sJ}, {14*1024}")
e(f"s_lshl_b32 {sT[4]}, {sW}, 12")
e(f"s_add_u32 {sHIDW}, {sHIDW}, {sT[4]}")
e(f"s_add_u32 {sHIDW}, {sHIDW}, {sT[3]}")
e(f"s_mul_i32 {sHIDR}, {sW}, {28*1024}")
e(f"s_add_u32 {sHIDR}, {sHIDR}, {sT[3]}")
e(f"s_lshl_b32 {sWOB}, {sJ}, 16")
e(f"s_lshl_b32 {sT[4]}, {sW}, 14")
e(f"s_add_u32 {sWOB}, {sWOB}, {sT[4]}")
e(f"s_add_u32 {sWOB}, {sWOB}, {WS_WOF}")
e(f"s_mul_i32 {sW1B}, {sJ}, 7")
e(f"s_lshl_b32 {sT[4]}, {sW}, 1")
e(f"s_add_u32 {sW1B}, {sW1B}, {sT[4]}")
e(f"s_mul_i32 {sW1B}, {sW1B}, {28*1024}")
e(f"s_add_u32 {sW1B}, {sW1B}, {WS_W1F}")
e(f"s_mul_i32 {sW2B}, {sJ}, {224*1024}")
e(f"s_mul_i32 {sT[4]}, {sW}, {56*1024}")
e(f"s_add_u32 {sW2B}, {sW2B}, {sT[4]}")
e(f"s_add_u32 {sW2B}, {sW2B}, {WS_W2F}")
e(f"s_lshl_b32 {sT[4]}, {sQH}, 8")
e(f"s_lshl_b32 {sT[5]}, {sCT}, 10")
e(f"s_or_b32 {sT[4]}, {sT[4]}, {sT[5]}")
e(f"v_xor_b32 {vW2A}, {sT[4]}, {vL16}")
e(f"v_xor_b32 {vT3}, 0x400, {vW2A}")
e(f"s_lshl_b32 {sT[5]}, {sJ}, 16")
e(f"s_sub_u32 {sT[5]}, {WS_RM - WS_WOF:#x}, {sT[5]}")
e(f"v_lshrrev_b32 {vT0}, 5, {vLANE}")
e(f"v_lshl_add_u32 {vT0}, {vT0}, 4, {sT[5]}")
e(f"v_and_b32 {vT1}, 0x5f0, {vW2A}")
e(f"v_cmp_eq_u32 vcc, {1024+24*16:#x}, {vT1}")
e(f"v_cndmask_b32 {vWOA0}, {vW2A}, {vT0}, vcc")
e(f"v_and_b32 {vT1}, 0x5f0, {vT3}")
e(f"v_cmp_eq_u32 vcc, {1024+24*16:#x}, {vT1}")
e(f"v_cndmask_b32 {vWOA1}, {vT3}, {vT0}, vcc")
e(f"s_cmp_eq_u32 {sW}, 3")
e(f"s_cselect_b32 {sT[4]}, {OOB:#x}, 0")
e(f"v_add_u32 {vW1B}, {sT[4]}, {vL16}")
for i in range(4):
    e(f"v_mov_b32 v{SENT+i}, -1")
srd(SRD_OUT, 36, 2048 * 896)
e(f"s_cmp_lg_u32 {sW}, 0")
e("s_cbranch_scc1 L_p1_b5")
stA = g.state()
e(f"s_mov_b32 {sSPIN}, 0")
g.label("L_f1_chk")
g.wait_regs("v[96:103]")
e(f"v_xor_b32 v96, {sNONCE}, v96")
e(f"v_xor_b32 v98, {sNONCE}, v98")
e(f"v_xor_b32 v100, {sNONCE}, v100")
e(f"v_xor_b32 v102, {sNONCE}, v102")
e("v_or3_b32 v96, v96, v98, v100")
e("v_or_b32 v96, v96, v102")
e("v_cmp_ne_u32 vcc, 0, v96")
e("s_cbranch_vccz L_f1_ok")
spin_guard("L_f1_ok")
e("s_sleep 4")
ld4("v[96:99]", vF1, "0")
ld4("v[100:103]", vF1, "0", 16)
e("s_waitcnt vmcnt(0)")
e("s_branch L_f1_chk")
g.label("L_f1_ok")
e("v_max3_u32 v97, v97, v99, v101")
e("v_max_u32 v97, v97, v103")
wave_max_u32("v97", sT[3], sT[2])
e(f"v_mov_b32 v97, {sT[2]}")
e(f"ds_write_b32 {vZERO}, v97 offset:{L_MISC+20}")
g.join([stA, g.state()])
g.label("L_p1_b5")
stamp("preB5")
g.barrier()
stamp("B5")


def kv_load(kt, part):
    b = KVB + 16 * (kt % 3)
    if part == 0:
        if kt:
            e(f"s_add_u32 {sKV}, {sKV}, 4096")
        ld4(vr(b, 4), vL16, sKV, 0)
        ld4(vr(b + 4, 4), vL16, sKV, 1024)
    else:
        ld4(vr(b + 8, 4), vL16, sT[15], 2048)
        ld4(vr(b + 12, 4), vL16, sT[15], 3072)
        e(f"s_add_u32 {sT[15]}, {sT[15]}, 4096")


e(f"s_mov_b32 {sT[15]}, {sKV}")
for kt in range(3):
    kv_load(kt, 0)
    kv_load(kt, 1)
for s in range(4):
    e(f"s_add_u32 {sT[2]}, {sW}, {s}")
    e(f"s_and_b32 {sT[2]}, {sT[2]}, 3")
    e(f"s_lshl_b32 {sT[2]}, {sT[2]}, 11")
    e(f"v_add_u32 {vT0}, {sT[2]}, {vL16}")
    e(f"ds_read_b128 {ar(AQ+8*s,4)}, {vT0} offset:{L_QX}")
    e(f"ds_read_b128 {ar(AQ+8*s+4,4)}, {vT0} offset:{L_QX+1024}")
e(f"ds_read_b128 v[24:27], {vZERO} offset:{L_MISC+32}")
e(f"ds_read_b32 v28, {vZERO} offset:{L_MISC+20}")
e(f"ds_read_b32 v29, {vZERO} offset:{L_MISC}")
e("v_max3_f32 v24, v24, v25, v26")
e("v_max_f32 v24, v24, v27")
e("v_mul_f32 v24, v24, v28")
e(f"v_readfirstlane_b32 {sNONCE}, v29")
e(f"v_cmp_ngt_f32 vcc, {f2u(96.0):#x}, v24")
if FORCE_SLOW:
    e("s_branch L_slow")
else:
    e("s_cbranch_vccnz L_slow")
st_slow = g.state()


def flag_off(base, dst):
    e(f"s_and_b32 {dst}, s2, 63")
    e(f"s_lshl_b32 {dst}, {dst}, 7")
    e(f"s_lshr_b32 {sT[3]}, s2, 6")
    e(f"s_lshl_b32 {sT[3]}, {sT[3]}, 2")
    e(f"s_add_u32 {dst}, {dst}, {sT[3]}")
    e(f"s_add_u32 {dst}, {dst}, {base}")


def signal_end(vtmp, which, uniq):
    e(f"v_readfirstlane_b32 {sT[2]}, {vtmp}")
    e(f"s_cmp_lg_u32 {sT[2]}, 3")
    e(f"s_cbranch_scc1 L_sig_{uniq}")
    st = g.state()
    if which == 2:
        flag_off(WS_FLAG2, sT[2])
    else:
        e(f"s_lshl_b32 {sT[2]}, {sG}, 7")
        e(f"s_lshl_b32 {sT[3]}, {sJ}, 2")
        e(f"s_add_u32 {sT[2]}, {sT[2]}, {sT[3]}")
        e(f"s_add_u32 {sT[2]}, {sT[2]}, {WS_FLAG3}")
    e(f"v_mov_b32 {vtmp}, {sNONCE}")
    e("s_mov_b64 exec, 1")
    e(f"buffer_store_dword {vtmp}, {vZERO}, {SRD_WS}, {sT[2]} offen sc1")
    e("s_mov_b64 exec, -1")
    g.join([st, g.state()])
    g.label(f"L_sig_{uniq}")


def poll2_issue():
    e(f"v_lshlrev_b32 {vT4}, 7, {vLANE}")
    e(f"s_mov_b32 {sT[2]}, {WS_FLAG2}")
    ld4(vr(POLL, 4) if not PROF else "v[240:243]", vT4, sT[2])


def poll2_check(uniq):
    P = POLL if not PROF else 240
    e(f"s_mov_b32 {sSPIN}, 0")
    g.label(f"L_p2c_{uniq}")
    e(f"v_xor_b32 v{P}, {sNONCE}, v{P}")
    e(f"v_xor_b32 v{P+1}, {sNONCE}, v{P+1}")
    e(f"v_xor_b32 v{P+2}, {sNONCE}, v{P+2}")
    e(f"v_xor_b32 v{P+3}, {sNONCE}, v{P+3}")
    e(f"v_or3_b32 v{P}, v{P}, v{P+1}, v{P+2}")
    e(f"v_or_b32 v{P}, v{P}, v{P+3}")
    e(f"v_cmp_ne_u32 vcc, 0, v{P}")
    e(f"s_cbranch_vccz L_p2k_{uniq}")
    st = g.state()
    spin_guard(f"L_p2k_{uniq}")
    e("s_sleep 4")
    poll2_issue()
    e("s_waitcnt vmcnt(0)")
    e(f"s_branch L_p2c_{uniq}")
    g.set_state(st)
    g.label(f"L_p2k_{uniq}")


def poll3_issue():
    e(f"v_and_b32 {vT4}, 7, {vLANE}")
    e(f"v_lshlrev_b32 {vT4}, 2, {vT4}")
    e(f"s_lshl_b32 {sT[2]}, {sG}, 7")
    e(f"s_add_u32 {sT[2]}, {sT[2]}, {WS_FLAG3}")
    e(f"buffer_load_dword {vT5}, {vT4}, {SRD_WS}, {sT[2]} offen sc1")


def poll3_check(uniq):
    e(f"s_mov_b32 {sSPIN}, 0")
    g.label(f"L_p3c_{uniq}")
    e(f"v_cmp_ne_u32 vcc, {sNONCE}, {vT5}")
    e(f"s_cbranch_vccz L_p3k_{uniq}")
    st = g.state()
    spin_guard(f"L_p3k_{uniq}")
    e("s_sleep 4")
    poll3_issue()
    e("s_waitcnt vmcnt(0)")
    e(f"s_branch L_p3c_{uniq}")
    g.set_state(st)
    g.label(f"L_p3k_{uniq}")


def h_store(src4, rt, uniq, tag):
    if rt:
        e(f"s_add_u32 {sT[4]}, {sHFW}, {28*1024}")
    so = sT[4] if rt else sHFW
    e(f"s_cmp_eq_u32 {sW}, 3")
    e(f"s_cbranch_scc1 L_hs3_{uniq}")
    st = g.state()
    st4(vr(src4, 4), vL16, so, tag=tag)
    e(f"s_branch L_hsd_{uniq}")
    st1 = g.state()
    g.set_state(st)
    g.label(f"L_hs3_{uniq}")
    e(f"v_lshlrev_b32 {vT4}, 3, {vLANE}")
    e(f"buffer_store_dwordx2 {vr(src4,2)}, {vT4}, {SRD_WS}, {so} offen sc1", tag=tag)
    g.join([st1, g.state()])
    g.label(f"L_hsd_{uniq}")


def sentinel_ops(uniq):
    ops = []
    for f in range(2):
        ops.append(lambda f=f: st4(vr(SENT, 4), vL16, sOFW, f * 1024, tag="sent"))
    for rt in range(2):
        ops.append(lambda rt=rt: h_store(SENT, rt, f"{uniq}s{rt}", "sent"))
    for rt in range(2):
        for c in range(2):
            def f2(rt=rt, c=c):
                if rt and c == 0:
                    e(f"s_add_u32 {sT[5]}, {sHIDW}, {112*1024}")
                for f in range(2):
                    st4(vr(SENT, 4), vW1B if c else vL16, sT[5] if rt else sHIDW, c * 2048 + f * 1024, tag="sent")
            ops.append(f2)
    return ops


def prefetch_ops():
    ops = []
    for t in range(8):
        for a in range(2):
            def f(t=t, a=a):
                if t % 2 == 0 and a == 0:
                    e(f"s_add_u32 {sT[6]}, {sWOB}, {t*2048}")
                ld4(vr(WOR + 8 * t + 4 * a, 4), vWOA1 if a else vWOA0, sT[6], (t % 2) * 2048)
            ops.append(f)
    for c in range(2):
        for t in range(28):
            def f(t=t, c=c):
                if t % 4 == 0:
                    e(f"s_add_u32 {sT[6]}, {sW1B}, {(c*28+t)*1024}")
                ld4(ar(112 * c + 4 * t, 4), vW1B if c else vL16, sT[6], (t % 4) * 1024)
            ops.append(f)
    return ops


extras = {i: [] for i in range(-1, 70)}
extras[1].append(lambda: (g.wait_tag("ppst"), last_wave_signal_begin(8, vT6)))
extras[2].append(lambda: signal_end(vT6, 2, "f2"))
so = sentinel_ops("a")
for k, op in enumerate(so):
    extras[3 + k].append(op)
extras[9].append(poll2_issue)
extras[13].append(lambda: poll2_check("a"))
extras[24].append(lambda: (g.wait_tag("sent"), last_wave_signal_begin(12, vT6)))
extras[25].append(lambda: signal_end(vT6, 3, "f3"))
pf = prefetch_ops()
slots = list(range(14, 62))
for k, op in enumerate(pf):
    extras[slots[k * len(slots) // len(pf)]].append(op)
extras[56].append(poll3_issue)
extras[63].append(lambda: poll3_check("a"))
for kt in range(13):
    extras[4 * kt + 3].insert(0, lambda kt=kt: kv_load(kt + 3, 0))
    extras[4 * kt + 5].insert(0, lambda kt=kt: kv_load(kt + 3, 1))


def qk(i, half):
    kt, s = i >> 2, i & 3
    b = KVB + 16 * (kt % 3)
    S = vr(S0 if i % 2 == 0 else S1, 16)
    if half == 0 and s == 0:
        g.wait_regs(vr(b, 8))
    mfma32(S, vr(b + 4 * half, 4), ar(AQ + 8 * s + 4 * half, 4), S if half else "0")


def pv(i, half):
    kt, s = i >> 2, i & 3
    b = KVB + 16 * (kt % 3) + 8
    O = vr(OA + 16 * s, 16)
    if half == 0 and s == 0:
        g.wait_regs(vr(b, 8))
    P = P0 if i % 2 == 0 else P1
    mfma32(O, vr(b + 4 * half, 4), vr(P + 4 * half, 4), "0" if (kt == 0 and half == 0) else O)


g.raw(".p2align 3")
g.hot = True
qk(0, 0)
qk(0, 1)
stamp("attn0")
for i in range(64):
    S = S0 if i % 2 == 0 else S1
    P = P0 if i % 2 == 0 else P1
    for quarter in range(4):
        if quarter < 2:
            if i + 1 < 64:
                qk(i + 1, quarter)
        elif i > 0:
            pv(i - 1, quarter - 2)
        if quarter == 0:
            for op in extras[i]:
                op()
        r0 = 4 * quarter
        for r in range(r0, r0 + 4):
            e(f"v_exp_f32 v{S+r}, v{S+r}")
        if quarter > 0:
            e(f"v_cvt_pk_bf16_f32 v{P+2*quarter-1}, v{S+r0-2}, v{S+r0-1}")
        e(f"v_cvt_pk_bf16_f32 v{P+2*quarter}, v{S+r0}, v{S+r0+1}")
        if quarter == 3:
            e(f"v_cvt_pk_bf16_f32 v{P+7}, v{S+14}, v{S+15}")
pv(63, 0)
pv(63, 1)
g.hot = False
st_fast = g.state()
g.label("L_comb")
stamp("attn1")
comb_start = len(g.items)
for s in range(1, 4):
    e(f"s_add_u32 {sT[2]}, {sW}, {s}")
    e(f"s_and_b32 {sT[2]}, {sT[2]}, 3")
    e(f"s_mul_i32 {sT[2]}, {sT[2]}, 12288")
    e(f"s_add_u32 {sT[2]}, {sT[2]}, {L_COMB}")
    e(f"v_add_u32 {vT0}, {sT[2]}, {vL16}")
    for q in range(4):
        e(f"ds_write_b128 {vT0}, {vr(OA+16*s+4*q,4)} offset:{(s-1)*4096+q*1024}")
e(f"s_mul_i32 {sT[2]}, {sW}, 12288")
e(f"v_add_u32 {vEXC}, {sT[2]}, {vL16}")
e(f"v_add_u32 {vT0}, {L_COMB}, {vEXC}")
g.barrier()
for s in range(3):
    for q in range(4):
        e(f"ds_read_b128 {vr(OA+16+16*s+4*q,4)}, {vT0} offset:{s*4096+q*1024}")
for s in range(3):
    for r in range(16):
        e(f"v_add_f32 v{OA+r}, v{OA+r}, v{OA+16+16*s+r}")
e(f"v_mov_b32 {vT0}, v{OA+12}")
e(f"v_mov_b32 {vT1}, v{OA+12}")
e(f"v_permlane32_swap_b32 {vT0}, {vT1}")
e(f"v_rcp_f32 {vT1}, {vT1}")
for r in range(16):
    e(f"v_mul_f32 v{OA+r}, {vT1}, v{OA+r}")
for r in range(8):
    e(f"v_cvt_pk_bf16_f32 v{S0+r}, v{OA+2*r}, v{OA+2*r+1}")
e(f"v_cndmask_b32 v{S0+6}, v{S0+6}, {vZERO}, {sMASKH}")
e(f"v_cndmask_b32 v{S0+7}, v{S0+7}, {vZERO}, {sMASKH}")
st4(vr(S0, 4), vL16, sOFW, 0)
st4(vr(S0 + 4, 4), vL16, sOFW, 1024)
stamp("ostore")
w2home = {}
fr = [(t, a) for t in range(28) for a in range(2)]
homes1 = [vr(148 + 4 * i, 4) for i in range(8)] + [ar(AQ + 4 * i, 4) for i in range(8)]
homes2 = [vr(180 + 4 * i, 4) for i in range(16)] + [vr(140 + 4 * i, 4) for i in range(2)]
homes3 = [ar(4 * i, 4) for i in range(11)] + [ar(112 + 4 * i, 4) for i in range(11)]
homes3 = [homes3[i // 2 + 11 * (i % 2)] for i in range(22)]
for k, hm in enumerate(homes1 + homes2 + homes3):
    w2home[fr[k]] = hm
ACC5 = [64, 80, 176, 192]


def w2_load(k):
    t, a = fr[k]
    if k % 4 == 0 or k in (16, 34):
        e(f"s_add_u32 {sT[6]}, {sW2B}, {(t//2)*4096}")
    ld4(w2home[(t, a)], vT3 if a else vW2A, sT[6], (t % 2) * 2048)


for k in range(16):
    w2_load(k)
OFR = [20 + 4 * i for i in range(12)] + [132 + 4 * i for i in range(4)]
ACC3 = OA
e(f"s_mov_b32 {sSPIN}, 0")
g.label("L_p3_try")
e(f"s_add_u32 {sT[2]}, {sOFR}, 4096")
e(f"s_add_u32 {sT[3]}, {sOFR}, 32768")
e(f"s_add_u32 {sT[4]}, {sOFR}, {32768+4096}")
for t in range(8):
    for rt in range(2):
        so_ = ((sOFR, sT[2]), (sT[3], sT[4]))[rt][t // 4]
        ld4(vr(OFR[2 * t + rt], 4), vL16, so_, (t % 4) * 1024)
e(f"v_mov_b32 {vCHK}, 0")
for t in range(8):
    for rt in range(2):
        B = OFR[2 * t + rt]
        for a in range(2):
            acc = vr(ACC3 + 32 * rt + 16 * a, 16)
            mfma32(acc, vr(WOR + 8 * t + 4 * a, 4), vr(B, 4), acc if t else "0")
            e(f"v_max3_u32 {vCHK}, {vCHK}, v{B+2*a}, v{B+2*a+1}")
e(f"v_cmp_eq_u32 vcc, -1, {vCHK}")
e("s_cbranch_vccz L_p3_ok")
spin_guard("L_p3_ok")
e("s_sleep 2")
e("s_branch L_p3_try")
g.label("L_p3_ok")
stamp("p3gemm")


def exch_write(delta, regs_fn, base, kind="v"):
    e(f"s_xor_b32 {sT[2]}, {sW}, {delta}")
    e(f"s_mul_i32 {sT[2]}, {sT[2]}, 12288")
    e(f"v_add_u32 {vT0}, {sT[2]}, {vL16}")


for d in range(1, 4):
    exch_write(d, None, None)
    for rt in range(2):
        for q in range(2):
            e(f"ds_write_b128 {vT0}, {vr(ACC3+32*rt+16*(d&1)+8*(d>>1)+4*q,4)} offset:{L_RED3+(d-1)*4096+rt*2048+q*1024}")
e(f"v_lshlrev_b32 {vT1}, 2, {vLANE}")
e(f"s_lshl_b32 {sT[2]}, {sW}, 9")
e(f"v_add_u32 {vT0}, {sT[2]}, {vT1}")
st = g.state()
ends = []
for w in range(4):
    if w < 3:
        e(f"s_cmp_lg_u32 {sW}, {w}")
        e(f"s_cbranch_scc1 L_mu_{w+1}")
    reg = 16 * (1 ^ (w & 1)) + (4 if w >> 1 else 12)
    for rt in range(2):
        e(f"ds_write_b32 {vT0}, v{ACC3+32*rt+reg} offset:{L_MX+rt*256}")
    if w < 3:
        e("s_branch L_mu_done")
        ends.append(g.state())
        g.set_state(st)
        g.label(f"L_mu_{w+1}")
g.join(ends + [g.state()])
g.label("L_mu_done")
g.barrier()
RB = 20
for d in range(3):
    for rt in range(2):
        for q in range(2):
            e(f"ds_read_b128 {vr(RB+16*d+8*rt+4*q,4)}, {vEXC} offset:{L_RED3+d*4096+rt*2048+q*1024}")
e(f"v_and_b32 {vT1}, 31, {vLANE}")
e(f"v_lshlrev_b32 {vT0}, 2, {vT1}")
e(f"v_lshlrev_b32 {vT1}, 3, {vT1}")
e(f"v_add_u32 {vT0}, {L_MX}, {vT0}")
e(f"v_add_u32 {vT1}, {L_STATS}, {vT1}")
MU = 132
for rt in range(2):
    e(f"ds_read2st64_b32 {vr(MU+4*rt,2)}, {vT0} offset0:{rt} offset1:{rt+2}")
    e(f"ds_read2st64_b32 {vr(MU+4*rt+2,2)}, {vT0} offset0:{rt+4} offset1:{rt+6}")
    e(f"ds_read_b32 v{MU+8+rt}, {vT1} offset:{rt*256}")
for rt in range(2):
    A = ACC3 + 32 * rt
    for d in range(3):
        for r in range(8):
            e(f"v_add_f32 v{A+r}, v{A+r}, v{RB+16*d+8*rt+r}")
    e(f"v_add_f32 v{MU+4*rt}, v{MU+4*rt}, v{MU+4*rt+1}")
    e(f"v_add_f32 v{MU+4*rt+2}, v{MU+4*rt+2}, v{MU+4*rt+3}")
    e(f"v_add_f32 v{MU+4*rt}, v{MU+4*rt}, v{MU+4*rt+2}")
    e(f"v_add_f32 v{MU+4*rt}, v{MU+4*rt}, v{MU+8+rt}")
    for i in range(4):
        x = XRES + 4 * rt + i
        e(f"v_lshlrev_b32 v{A+8}, 16, v{x}")
        e(f"v_and_b32 v{A+9}, 0xffff0000, v{x}")
        e(f"v_add_f32 v{A+2*i}, v{A+2*i}, v{A+8}")
        e(f"v_add_f32 v{A+2*i+1}, v{A+2*i+1}, v{A+9}")
        e(f"v_cvt_pk_bf16_f32 v{x}, v{A+2*i}, v{A+2*i+1}")
    for i in range(4):
        x = XRES + 4 * rt + i
        e(f"v_lshlrev_b32 v{A+8}, 16, v{x}")
        e(f"v_and_b32 v{A+9}, 0xffff0000, v{x}")
        e(f"v_sub_f32 v{A+8}, v{A+8}, v{MU+4*rt}")
        e(f"v_sub_f32 v{A+9}, v{A+9}, v{MU+4*rt}")
        e(f"v_cvt_pk_bf16_f32 v{A+12+i}, v{A+8}, v{A+9}")
    h_store(A + 12, rt, f"h{rt}", None)
stamp("hstore")
for k in range(16, 34):
    w2_load(k)
HS = 20
e(f"s_mul_i32 {sT[2]}, {sW}, {14*1024}")
e(f"s_and_b32 {sT[3]}, {sW}, 1")
e(f"s_lshr_b32 {sT[4]}, {sW}, 1")
e(f"s_mul_i32 {sT[3]}, {sT[3]}, {28*1024}")
e(f"s_mul_i32 {sT[4]}, {sT[4]}, {14*1024}")
e(f"s_add_u32 {sT[3]}, {sT[3]}, {sT[4]}")
e(f"s_add_u32 {sT[3]}, {sT[3]}, {L_HSH}")
e(f"v_add_u32 {vT1}, {sT[3]}, {vL16}")
e(f"v_lshlrev_b32 {vT4}, 3, {vLANE}")
e(f"s_mov_b32 {sSPIN}, 0")
g.label("L_p4_try")
for t in range(14):
    if t % 4 == 0:
        e(f"s_add_u32 {sT[2]}, {sHFR}, {t*1024}")
    if t in (3, 10):
        for hh in range(2):
            e(f"buffer_load_dwordx2 {vr(HS+4*t+2*hh,2)}, {vT4}, {SRD_WS}, {sT[2]} offen offset:{(t%4)*1024+hh*512} sc1")
    else:
        ld4(vr(HS + 4 * t, 4), vL16, sT[2], (t % 4) * 1024)
e(f"v_mov_b32 {vCHK}, 0")
for t in range(14):
    B = HS + 4 * t
    e(f"ds_write_b128 {vT1}, {vr(B,4)} offset:{t*1024}")
    e(f"v_max3_u32 {vCHK}, {vCHK}, v{B}, v{B+1}")
    e(f"v_max3_u32 {vCHK}, {vCHK}, v{B+2}, v{B+3}")
    for i in range(4):
        a = "v76" if i % 2 == 0 else "v77"
        e(f"v_dot2_f32_bf16 {a}, v{B+i}, v{B+i}, {a if (t or i >= 2) else '0'}")
e(f"v_cmp_eq_u32 vcc, -1, {vCHK}")
e("s_cbranch_vccz L_p4_ok")
spin_guard("L_p4_ok")
e("s_sleep 2")
e("s_branch L_p4_try")
g.label("L_p4_ok")
e("v_add_f32 v76, v76, v77")
e(f"v_lshlrev_b32 {vT0}, 2, {vLANE}")
e(f"s_lshl_b32 {sT[2]}, {sW}, 8")
e(f"v_add_u32 {vT0}, {sT[2]}, {vT0}")
e(f"ds_write_b32 {vT0}, v76 offset:{L_SQ}")
stamp("hload")
g.barrier()
stamp("B7")
ACC1 = [20, 108]
BR, B1R, GT = 52, 68, 84
vRS = ["v104", "v105"]
vC0 = "v106"
vB1A = "v107"
e(f"v_and_b32 {vT0}, 31, {vLANE}")
e(f"v_lshlrev_b32 {vT0}, 2, {vT0}")
e(f"v_add_u32 {vT0}, {L_SQ}, {vT0}")
for rt in range(2):
    e(f"ds_read2_b32 {vr(GT+4*rt,2)}, {vT0} offset0:{rt*64} offset1:{rt*64+32}")
    e(f"ds_read2_b32 {vr(GT+4*rt+2,2)}, {vT0} offset0:{rt*64+128} offset1:{rt*64+160}")


def b_read(rt, t):
    e(f"ds_read_b128 {vr(BR+4*(t%4),4)}, {vT1} offset:{(rt*28+t)*1024}")


e(f"v_add_u32 {vT1}, {L_HSH}, {vL16}")
for t in range(3):
    b_read(0, t)
C0 = -2.0 * (2 / 3.141592653589793) ** 0.5 * 1.4426950408889634
C1 = C0 * 0.044715
e(f"v_mov_b32 {vC0}, {f2u(C0):#x}")
e(f"v_lshrrev_b32 {vB1A}, 5, {vLANE}")
e(f"v_lshlrev_b32 {vB1A}, 4, {vB1A}")
e(f"s_lshl_b32 {sT[2]}, {sW}, 8")
e(f"v_add_u32 {vB1A}, {sT[2]}, {vB1A}")
for rt in range(2):
    T = GT + 4 * rt
    e(f"v_add_f32 v{T}, v{T}, v{T+1}")
    e(f"v_add_f32 v{T+2}, v{T+2}, v{T+3}")
    e(f"v_add_f32 v{T}, v{T}, v{T+2}")
    e(f"v_mul_f32 v{T}, {f2u(1/448):#x}, v{T}")
    e(f"v_add_f32 v{T}, {f2u(1e-5):#x}, v{T}")
    e(f"v_rsq_f32 {vRS[rt]}, v{T}")


def gelu_ops(rt):
    ops = []
    for c in range(2):
        A = ACC1[rt] + 16 * c
        for q in range(4):
            ops.append(lambda c=c, q=q: e(f"ds_read_b128 {vr(B1R+4*q,4)}, {vB1A} offset:{L_B1+c*128+q*32}"))
        for grp in range(4):
            rs = [A + 4 * grp + i for i in range(4)]
            ts = [GT + 4 * (grp % 2) + i for i in range(4)]
            seq = [
                lambda r, t_, c=c, A=A: e(f"v_fma_f32 v{r}, v{r}, {vRS[rt]}, v{B1R+r-A}"),
                lambda r, t_: e(f"v_mul_f32 v{t_}, v{r}, v{r}"),
                lambda r, t_: e(f"v_fmamk_f32 v{t_}, v{t_}, {f2u(C1):#x}, {vC0}"),
                lambda r, t_: e(f"v_mul_f32 v{t_}, v{t_}, v{r}"),
                lambda r, t_: e(f"v_exp_f32 v{t_}, v{t_}"),
                lambda r, t_: e(f"v_add_f32 v{t_}, 1.0, v{t_}"),
                lambda r, t_: e(f"v_rcp_f32 v{t_}, v{t_}"),
                lambda r, t_: e(f"v_mul_f32 v{r}, v{r}, v{t_}"),
            ]
            for fn in seq:
                for r, t_ in zip(rs, ts):
                    ops.append(lambda fn=fn, r=r, t_=t_: fn(r, t_))
            PK = GT + 8 + 4 * ((grp >> 1) + 2 * c) % 12
            PK = GT + 8 + 4 * (((grp >> 1) + 2 * c) % 3)
            for i in range(2):
                ops.append(lambda PK=PK, grp=grp, i=i, rs=rs: e(f"v_cvt_pk_bf16_f32 v{PK+2*(grp&1)+i}, v{rs[2*i]}, v{rs[2*i+1]}"))
            if grp & 1:
                def stf(PK=PK, c=c, f=grp >> 1):
                    if rt and c == 0 and f == 0:
                        e(f"s_add_u32 {sT[5]}, {sHIDW}, {112*1024}")
                    st4(vr(PK, 4), vW1B if c else vL16, sT[5] if rt else sHIDW, c * 2048 + f * 1024)
                ops.append(stf)
    return ops


g.hot = True
for t in range(28):
    if t + 3 < 28:
        b_read(0, t + 3)
    else:
        b_read(1, t + 3 - 28)
    for c in range(2):
        acc = vr(ACC1[0] + 16 * c, 16)
        mfma32(acc, ar(112 * c + 4 * t, 4), vr(BR + 4 * (t % 4), 4), acc if t else "0")
stamp("ffn1a")
gops = gelu_ops(0)
gi = 0
w2k = 34
for t in range(28):
    if t + 3 < 28:
        b_read(1, t + 3)
    for c in range(2):
        acc = vr(ACC1[1] + 16 * c, 16)
        mfma32(acc, ar(112 * c + 4 * t, 4), vr(BR + 4 * (t % 4), 4), acc if t else "0")
        m = 2 * t + c
        want = 0 if m < 2 else (m - 1) * len(gops) // 54
        while gi < min(want, len(gops)):
            gops[gi]()
            gi += 1
    if 1 <= t <= 11:
        w2_load(w2k)
        w2_load(w2k + 1)
        w2k += 2
while gi < len(gops):
    gops[gi]()
    gi += 1
assert w2k == 56
stamp("ffn1b")
HR = 20


def hid_load(rt, t):
    if t % 4 == 0:
        e(f"s_add_u32 {sT[7+rt]}, {sHIDR}, {(rt*112+t)*1024}")
    ld4(vr(HR + 4 * t, 4), vL16, sT[7 + rt], (t % 4) * 1024)


gops = gelu_ops(1)
EARLY = 12
for k, op in enumerate(gops):
    op()
    if k == len(gops) * 3 // 4:
        for t in range(EARLY):
            hid_load(0, t)
g.hot = False
stamp("gelu1")
LAG = 12
e(f"s_mov_b32 {sSPIN}, 0")
g.label("L_p5a_body")
for t in range(EARLY, 28):
    hid_load(0, t)
vCH2 = vT5
e(f"v_mov_b32 {vCHK}, 0")
for t in range(28):
    B = HR + 4 * t
    for a in range(2):
        acc = ar(ACC5[a], 16)
        mfma32(acc, w2home[(t, a)], vr(B, 4), acc if t else "0")
        e(f"v_max3_u32 {vCHK}, {vCHK}, v{B+2*a}, v{B+2*a+1}")
    if t >= LAG:
        hid_load(1, t - LAG)
e(f"v_cmp_eq_u32 vcc, -1, {vCHK}")
e("s_cbranch_vccz L_p5a_ok")
st = g.state()
spin_guard("L_p5a_ok")
e("s_waitcnt vmcnt(0)")
e("s_sleep 2")
for t in range(EARLY):
    hid_load(0, t)
e("s_waitcnt vmcnt(0)")
e("s_branch L_p5a_body")
g.set_state(st)
g.label("L_p5a_ok")
stamp("ffn2a")
for t in range(28 - LAG, 28):
    hid_load(1, t)
for d in range(1, 4):
    exch_write(d, None, None)
    for q in range(2):
        e(f"ds_write_b128 {vT0}, {ar(ACC5[d&1]+8*(d>>1)+4*q,4)} offset:{L_RED5+(d-1)*4096+q*1024}")
e(f"s_mov_b32 {sSPIN}, 0")
g.label("L_p5b_body")
e(f"v_mov_b32 {vCHK}, 0")
for t in range(28):
    B = HR + 4 * t
    for a in range(2):
        acc = ar(ACC5[2 + a], 16)
        mfma32(acc, w2home[(t, a)], vr(B, 4), acc if t else "0")
        e(f"v_max3_u32 {vCHK}, {vCHK}, v{B+2*a}, v{B+2*a+1}")
e(f"v_cmp_eq_u32 vcc, -1, {vCHK}")
e("s_cbranch_vccz L_p5b_ok")
st = g.state()
spin_guard("L_p5b_ok")
e("s_sleep 2")
for t in range(28):
    hid_load(1, t)
e("s_waitcnt vmcnt(0)")
e("s_branch L_p5b_body")
g.set_state(st)
g.label("L_p5b_ok")
stamp("ffn2b")
for d in range(1, 4):
    exch_write(d, None, None)
    for q in range(2):
        e(f"ds_write_b128 {vT0}, {ar(ACC5[2+(d&1)]+8*(d>>1)+4*q,4)} offset:{L_RED5+(d-1)*4096+2048+q*1024}")
FA = 68
for rt in range(2):
    for r in range(8):
        e(f"v_accvgpr_read_b32 v{FA+8*rt+r}, a{ACC5[2*rt]+r}")
e(f"s_mul_i32 {sT[2]}, {sJ}, 112")
e(f"s_sub_u32 {sT[2]}, {sC}, {sT[2]}")
e(f"s_lshl_b32 {sT[2]}, {sT[2]}, 1")
e(f"v_lshrrev_b32 {vT1}, 5, {vLANE}")
e(f"v_lshl_add_u32 {vT0}, {vT1}, 4, {sT[2]}")
e(f"ds_read_b128 v[84:87], {vT0} offset:{L_B2}")
e(f"ds_read_b128 v[88:91], {vT0} offset:{L_B2+32}")
e(f"v_and_b32 {vT0}, 31, {vLANE}")
e(f"v_mul_u32_u24 {vT0}, 896, {vT0}")
e(f"v_lshl_add_u32 {vT0}, {vT1}, 4, {vT0}")
e(f"s_cmp_eq_u32 {sW}, 3")
e(f"s_cselect_b32 {sT[4]}, {OOB:#x}, 0")
e(f"v_mov_b32 {vT2}, {sT[4]}")
e(f"v_cndmask_b32 {vT2}, {vZERO}, {vT2}, {sMASKH}")
e(f"v_add_u32 {vT2}, {vT2}, {vT0}")
e(f"s_mul_i32 {sT[3]}, {sG}, {64*896}")
e(f"s_add_u32 {sT[3]}, {sT[3]}, {sC}")
e(f"s_add_u32 {sT[4]}, {sT[3]}, {32*896}")
g.barrier()
for rt in range(2):
    for d in range(3):
        for q in range(2):
            e(f"ds_read_b128 {vr(RB+16*d+8*rt+4*q,4)}, {vEXC} offset:{L_RED5+d*4096+rt*2048+q*1024}")
for rt in range(2):
    A = FA + 8 * rt
    for r in range(8):
        e(f"v_add_f32 v{A+r}, v{A+r}, v{84+r}")
    for i in range(4):
        x = XRES + 4 * rt + i
        e(f"v_lshlrev_b32 v92, 16, v{x}")
        e(f"v_and_b32 v93, 0xffff0000, v{x}")
        e(f"v_add_f32 v{A+2*i}, v{A+2*i}, v92")
        e(f"v_add_f32 v{A+2*i+1}, v{A+2*i+1}, v93")
for rt in range(2):
    A = FA + 8 * rt
    for d in range(3):
        for r in range(8):
            e(f"v_add_f32 v{A+r}, v{A+r}, v{RB+16*d+8*rt+r}")
    OQ = 96 + 4 * rt
    for i in range(4):
        e(f"v_cvt_pk_bf16_f32 v{OQ+i}, v{A+2*i}, v{A+2*i+1}")
    e(f"v_permlane32_swap_b32 v{OQ}, v{OQ+2}")
    e(f"v_permlane32_swap_b32 v{OQ+1}, v{OQ+3}")
    e(f"buffer_store_dwordx4 {vr(OQ,4)}, {vT2}, {SRD_OUT}, {sT[3+rt]} offen")
stamp("end")
if PROF:
    e(f"s_lshl_b32 {sT[2]}, s2, 2")
    e(f"s_add_u32 {sT[2]}, {sT[2]}, {sW}")
    e(f"s_lshl_b32 {sT[2]}, {sT[2]}, 8")
    e(f"s_add_u32 {sT[2]}, {sT[2]}, {WS_PROF}")
    e(f"v_lshlrev_b32 {vT0}, 2, {vLANE}")
    e(f"buffer_store_dword v251, {vT0}, {SRD_WS}, {sT[2]} offen")
g.label("L_end")
e("s_endpgm")

g.set_state(st_slow)
g.label("L_slow")
e("s_waitcnt vmcnt(0) lgkmcnt(0)")
last_wave_signal_begin(8, vT6)
signal_end(vT6, 2, "f2s")
for op in sentinel_ops("b"):
    op()
e("s_waitcnt vmcnt(0)")
last_wave_signal_begin(12, vT6)
signal_end(vT6, 3, "f3s")
poll2_issue()
poll2_check("b")
for op in prefetch_ops():
    op()
poll3_issue()
poll3_check("b")
MM = 60
for s in range(4):
    e(f"v_mov_b32 v{MM+s}, 0xff7fffff")
    for r in range(16):
        e(f"v_mov_b32 v{OA+16*s+r}, 0")
e(f"s_sub_u32 {sKV}, {sKV}, 8192")
e(f"s_mov_b32 {sT[8]}, 0")
g.label("L_slow_loop")
for i in range(4):
    ld4(vr(KVB + 4 * i, 4), vL16, sKV, i * 1024)
e("s_waitcnt vmcnt(0)")
for s in range(4):
    S = vr(S0, 16)
    mfma32(S, vr(KVB, 4), ar(AQ + 8 * s, 4), "0")
    mfma32(S, vr(KVB + 4, 4), ar(AQ + 8 * s + 4, 4), S)
    e(f"v_max3_f32 v64, v{S0}, v{S0+1}, v{MM+s}")
    for r in range(2, 16, 2):
        e(f"v_max3_f32 v64, v{S0+r}, v{S0+r+1}, v64")
    e("v_mov_b32 v65, v64")
    e("v_permlane32_swap_b32 v64, v65")
    e("v_max_f32 v64, v64, v65")
    e(f"v_sub_f32 v65, v{MM+s}, v64")
    e("v_exp_f32 v65, v65")
    e(f"v_mov_b32 v{MM+s}, v64")
    for r in range(16):
        e(f"v_sub_f32 v{S0+r}, v{S0+r}, v64")
        e(f"v_exp_f32 v{S0+r}, v{S0+r}")
        e(f"v_mul_f32 v{OA+16*s+r}, v65, v{OA+16*s+r}")
    for r in range(8):
        e(f"v_cvt_pk_bf16_f32 v{P0+r}, v{S0+2*r}, v{S0+2*r+1}")
    O = vr(OA + 16 * s, 16)
    mfma32(O, vr(KVB + 8, 4), vr(P0, 4), O)
    mfma32(O, vr(KVB + 12, 4), vr(P0 + 4, 4), O)
e(f"s_add_u32 {sKV}, {sKV}, 4096")
e(f"s_add_u32 {sT[8]}, {sT[8]}, 1")
e(f"s_cmp_lt_u32 {sT[8]}, 16")
e("s_cbranch_scc1 L_slow_loop")
e(f"v_lshlrev_b32 {vT1}, 2, {vLANE}")
for s in range(4):
    e(f"s_add_u32 {sT[2]}, {sW}, {s}")
    e(f"s_and_b32 {sT[2]}, {sT[2]}, 3")
    e(f"s_lshl_b32 {sT[2]}, {sT[2]}, 10")
    e(f"v_add_u32 v{64+s}, {sT[2]}, {vT1}")
    e(f"s_lshl_b32 {sT[3]}, {sW}, 8")
    e(f"v_add_u32 {vT0}, {sT[3]}, v{64+s}")
    e(f"ds_write_b32 {vT0}, v{MM+s} offset:{L_MX}")
g.barrier()
for s in range(4):
    for k in range(4):
        e(f"ds_read_b32 v{S0+k}, v{64+s} offset:{L_MX+k*256}")
    e(f"v_max3_f32 v{S0}, v{S0}, v{S0+1}, v{S0+2}")
    e(f"v_max_f32 v{S0}, v{S0}, v{S0+3}")
    e(f"v_sub_f32 v{S0}, v{MM+s}, v{S0}")
    e(f"v_exp_f32 v{S0}, v{S0}")
    for r in range(16):
        e(f"v_mul_f32 v{OA+16*s+r}, v{S0}, v{OA+16*s+r}")
g.barrier()
e("s_waitcnt vmcnt(0) lgkmcnt(0)")
e("s_branch L_comb")
g.label("L_code_end")

body = g.finish()
n, nbytes, nops = g.stats()
body = body.replace("0x11111,", "L_code_end-L_pcref-4,")

HEADER = open("cdna_kernels/" + KNAME[:-7] + ".s.ref").read().split("; Override launch")[0]
src = HEADER + f"""; One persistent launch, 256 workgroups (one per CU), hand-offs between workgroups through d_ws.
; @launch grid=(256,1,1) block=(256,1,1) lds={LDS_BYTES}
.amdgcn_target "amdgcn-amd-amdhsa--gfx950"
.text
.globl {KNAME}
.p2align 8
.type {KNAME},@function
{body}
.section .rodata,"a"
.p2align 6
.amdhsa_kernel {KNAME}
  .amdhsa_next_free_vgpr 512
  .amdhsa_next_free_sgpr 102
  .amdhsa_accum_offset 256
  .amdhsa_group_segment_fixed_size 0
  .amdhsa_kernarg_size 104
  .amdhsa_user_sgpr_count 2
  .amdhsa_user_sgpr_kernarg_segment_ptr 1
  .amdhsa_system_sgpr_workgroup_id_x 1
  .amdhsa_float_denorm_mode_32 3
.end_amdhsa_kernel
"""
out = [a for a in sys.argv[1:] if not a.startswith("--")]
out = out[0] if out else "k.s"
open(out, "w").write(src)
if PROF:
    open(out + ".names", "w").write("\n".join(PROF_NAMES))
print(f"{out}: {n} instructions, {nbytes} bytes, {nops} s_nop")
```

```python
import sys, struct
from asmgen import Gen

KNAME = "sequential_preLN__grouped_kv_mqa__dense_activation_gelu__prompt_kernel"
PROF = "--prof" in sys.argv
TOUCH = "--notouch" not in sys.argv
FORCE_SLOW = "--slow" in sys.argv


def f2u(x):
    return struct.unpack("<I", struct.pack("<f", x))[0]


WS_FLAG1, WS_FLAG2, WS_FLAG3 = 0x0, 0x2000, 0x4000
WS_KV = 0x10000
WS_RM = 0xE0000
WS_WOF = 0x60000
WS_W1F = 0x100000
WS_W2F = 0x290000
WS_OF = 0x480000
WS_HF = 0x680000
WS_HID = 0x880000
WS_PROF = 0x1000000
WS_BYTES = 0x10000000
OOB = 0x7F000000
XB = 7296
L_MISC = 0
L_STATS = 256
L_B1 = 768
L_B2 = 1792
L_SQ = 2048
L_MX = 3072
L_QN = 7168
L_QX = 8192
L_X = 16384
L_WQ = L_X + 58368
L_WKV = L_WQ + 57344
L_CSX = L_MX
L_PPS = L_WKV
L_END = L_WKV + 25600
L_COMB = L_WQ
L_RED3 = L_X
L_HSH = L_WQ
L_RED5 = L_X
LDS_BYTES = 160 * 1024
SPIN_MAX = 1 << 17

sW, sJ, sG, sNONCE = "s4", "s5", "s6", "s7"
SRD_X, SRD_WS, SRD_WQ, SRD_WKV, SRD_PP, SRD_OUT, SRD_DBG, SRD_B = (f"s[{i}:{i+3}]" for i in (8, 12, 44, 48, 52, 56, 60, 64))
sT = [f"s{i}" for i in range(68, 84)]
sKV, sOFW, sOFR, sHFW, sHFR, sHIDW, sHIDR, sWOB, sW1B, sW2B = (f"s{i}" for i in range(84, 94))
sSPIN, sQ16, sKIND, sC = "s94", "s95", "s96", "s97"
sMASKH = "s[98:99]"
sPIDX = "s100"
sRET = "s101"
sROT7 = [f"s{i}" for i in range(16, 23)]
sROT8 = [f"s{i}" for i in range(23, 31)]
sFLG1 = "s40"
sKO = ["s41", "s101"]

g = Gen()
e = g.e


def vr(a, n=1):
    return f"v{a}" if n == 1 else f"v[{a}:{a+n-1}]"


def ar(a, n=1):
    return f"a{a}" if n == 1 else f"a[{a}:{a+n-1}]"


def srd(name, lo, nbytes):
    b = int(name[2:name.index(":")])
    e(f"s_mov_b32 s{b}, s{lo}")
    e(f"s_and_b32 s{b+1}, s{lo+1}, 0xffff")
    e(f"s_mov_b32 s{b+2}, {nbytes:#x}")
    e(f"s_mov_b32 s{b+3}, 0x20000")


vLANE, vL16 = "v0", "v1"
vZERO = "v2"
vWOA0, vWOA1, vW1B, vEXC = "v3", "v4", "v5", "v6"
vT0, vT1, vT2 = "v7", "v8", "v9"
XRES = 10
vW2A = "v18"
vT3 = "v19"
S0, S1, P0, P1, OA, KVB, WOR, SENT, POLL = 20, 36, 52, 60, 68, 132, 180, 244, 248
vCHK = "v252"
vT4, vT5, vT6 = "v253", "v254", "v255"
AQ = 224

prof_n = [0]


def stamp(name):
    if not PROF:
        return
    k = prof_n[0]
    prof_n[0] += 1
    PROF_NAMES.append(name)
    e("s_memtime s[42:43]")
    e("s_waitcnt lgkmcnt(0)")
    e(f"v_writelane_b32 v251, s42, {k}")


PROF_NAMES = []


def fstamp(k):
    if PROF:
        e("s_memtime s[42:43]")
        e("s_waitcnt lgkmcnt(0)")
        e(f"v_writelane_b32 v251, s42, {k}")


def pcount(name):
    if not PROF:
        return
    k = prof_n[0]
    prof_n[0] += 1
    PROF_NAMES.append("#" + name)
    e(f"v_writelane_b32 v251, {sSPIN}, {k}")


def mfma32(d, a, b, c):
    e(f"v_mfma_f32_32x32x16_bf16 {d}, {a}, {b}, {c}")


def mfma16(d, a, b, c):
    e(f"v_mfma_f32_16x16x32_bf16 {d}, {a}, {b}, {c}")


def dma(voff, srdn, soff, imm=0, tag=None):
    e(f"buffer_load_dwordx4 {voff}, {srdn}, {soff} offen{f' offset:{imm}' if imm else ''} lds", tag=tag)


def ld4(dst, voff, soff, imm=0, sc1=True, tag=None, srdn=SRD_WS):
    e(f"buffer_load_dwordx4 {dst}, {voff}, {srdn}, {soff} offen{f' offset:{imm}' if imm else ''}{' sc1' if sc1 else ''}", tag=tag)


def st4(src, voff, soff, imm=0, tag=None):
    e(f"buffer_store_dwordx4 {src}, {voff}, {SRD_WS}, {soff} offen{f' offset:{imm}' if imm else ''} sc1", tag=tag)


def wave_max_u32(v, tmp, sdst, rows=4):
    for r in (1, 2, 4, 8):
        e(f"v_max_u32_dpp {v}, {v}, {v} row_ror:{r} row_mask:0xf bank_mask:0xf")
    e(f"v_readlane_b32 {sdst}, {v}, 0")
    for k in range(1, rows):
        e(f"v_readlane_b32 {tmp}, {v}, {16*k}")
        e(f"s_max_u32 {sdst}, {sdst}, {tmp}")


def row_stats_multi(jobs):
    for (xa, X, sa) in jobs:
        for i in range(7):
            e(f"ds_read_b128 {vr(X+4*i,4)}, {xa} offset:{i*1024}")
    for (xa, X, sa) in jobs:
        a0, a1, q0, q1 = (vr(X + 28 + i) for i in range(4))
        for i in range(28):
            a, q = (a0, q0) if i % 2 == 0 else (a1, q1)
            c1, c2 = (a, q) if i >= 2 else ("0", "0")
            e(f"v_dot2_f32_bf16 {a}, {vr(X+i)}, v140, {c1}")
            e(f"v_dot2_f32_bf16 {q}, {vr(X+i)}, {vr(X+i)}, {c2}")
    for (xa, X, sa) in jobs:
        e(f"v_add_f32 v{X+28}, v{X+28}, v{X+29}")
        e(f"v_add_f32 v{X+30}, v{X+30}, v{X+31}")
    for m in ("quad_perm:[1,0,3,2]", "quad_perm:[2,3,0,1]", "row_half_mirror"):
        for (xa, X, sa) in jobs:
            e(f"v_add_f32_dpp v{X+28}, v{X+28}, v{X+28} {m} row_mask:0xf bank_mask:0xf")
            e(f"v_add_f32_dpp v{X+30}, v{X+30}, v{X+30} {m} row_mask:0xf bank_mask:0xf")
    for fn in (lambda X: f"v_mul_f32 v{X+34}, {f2u(1/448):#x}, v{X+28}",
               lambda X: f"v_mul_f32 v{X+30}, {f2u(1/448):#x}, v{X+30}",
               lambda X: f"v_fma_f32 v{X+30}, -v{X+34}, v{X+34}, v{X+30}",
               lambda X: f"v_max_f32 v{X+30}, 0, v{X+30}",
               lambda X: f"v_add_f32 v{X+30}, {f2u(1e-5):#x}, v{X+30}",
               lambda X: f"v_rsq_f32 v{X+35}, v{X+30}"):
        for (xa, X, sa) in jobs:
            e(fn(X))
    e("s_nop 0")
    for (xa, X, sa) in jobs:
        e(f"ds_write_b64 {sa}, {vr(X+34,2)}")


def row_stats(ldsaddr_v, base, statsaddr_v):
    X = base
    a0, a1, q0, q1, one = (vr(base + 28 + i) for i in range(5))
    for i in range(7):
        e(f"ds_read_b128 {vr(X+4*i,4)}, {ldsaddr_v} offset:{i*1024}")
    e(f"v_mov_b32 {one}, 0x3f803f80")
    for i in range(28):
        a, q = (a0, q0) if i % 2 == 0 else (a1, q1)
        c1, c2 = (a, q) if i >= 2 else ("0", "0")
        e(f"v_dot2_f32_bf16 {a}, {vr(X+i)}, {one}, {c1}")
        e(f"v_dot2_f32_bf16 {q}, {vr(X+i)}, {vr(X+i)}, {c2}")
    e("s_nop 2")
    e(f"v_add_f32 {a0}, {a0}, {a1}")
    e(f"v_add_f32 {q0}, {q0}, {q1}")
    for m in ("quad_perm:[1,0,3,2]", "quad_perm:[2,3,0,1]", "row_half_mirror"):
        e(f"v_add_f32_dpp {a0}, {a0}, {a0} {m} row_mask:0xf bank_mask:0xf")
        e(f"v_add_f32_dpp {q0}, {q0}, {q0} {m} row_mask:0xf bank_mask:0xf")
    mu, rs = vr(base + 34), vr(base + 35)
    e(f"v_mul_f32 {mu}, {f2u(1/448):#x}, {a0}")
    e(f"v_mul_f32 {q0}, {f2u(1/448):#x}, {q0}")
    e(f"v_fma_f32 {q0}, -{mu}, {mu}, {q0}")
    e(f"v_max_f32 {q0}, 0, {q0}")
    e(f"v_add_f32 {q0}, {f2u(1e-5):#x}, {q0}")
    e(f"v_rsq_f32 {rs}, {q0}")
    e("s_nop 0")
    e(f"ds_write_b64 {statsaddr_v}, {vr(base+34,2)}")


def last_wave_signal_begin(cnt_off, vtmp):
    e(f"v_mov_b32 {vtmp}, 1")
    e("s_mov_b64 exec, 1")
    e(f"ds_add_rtn_u32 {vtmp}, {vZERO}, {vtmp} offset:{L_MISC+cnt_off}")
    e("s_mov_b64 exec, -1")


def spin_guard(lbl_out):
    e(f"s_add_u32 {sSPIN}, {sSPIN}, 1")
    e(f"s_cmp_gt_u32 {sSPIN}, {SPIN_MAX}")
    e(f"s_cbranch_scc1 {lbl_out}")


g.raw(f"{KNAME}:")
e("s_cmp_ge_u32 s2, 256")
e("s_cbranch_scc1 L_end")
e("s_load_dwordx16 s[16:31], s[0:1], 0")
e("s_load_dwordx8 s[32:39], s[0:1], 64")
e("s_load_dwordx2 s[40:41], s[0:1], 96")
e("s_getpc_b64 s[64:65]")
g.label("L_pcref")
e(f"v_lshrrev_b32 {vT0}, 6, v0")
e("v_and_b32 v0, 63, v0")
e(f"s_lshr_b32 s3, s2, 3")
e(f"v_lshl_add_u32 {vT1}, s3, 2, {vT0}")
e(f"v_min_u32 {vT2}, 2, {vLANE}")
e(f"v_mad_u32_u24 {vT1}, {vT1}, 3, {vT2}")
e(f"v_lshlrev_b32 {vT1}, 7, {vT1}")
e(f"v_min_u32 {vT1}, 0x11111, {vT1}")
e(f"global_load_dword v232, {vT1}, s[64:65]")
if PROF:
    e("v_mov_b32 v251, 0")
    e("s_memtime s[42:43]")
e(f"v_readfirstlane_b32 {sW}, {vT0}")
e(f"v_lshlrev_b32 {vL16}, 4, {vLANE}")
e(f"v_mov_b32 {vZERO}, 0")
e(f"s_and_b32 {sJ}, s3, 7")
e(f"s_lshr_b32 s3, s3, 3")
e(f"s_and_b32 {sG}, s2, 7")
e(f"s_lshl2_add_u32 {sG}, {sG}, s3")
e(f"s_lshr_b32 {sQ16}, {sJ}, 1")
e(f"s_and_b32 {sKIND}, {sJ}, 1")
vXO, vWQO, vXE, vXD, vWT, vST, vKVO, vNP = (f"v{i}" for i in range(20, 28))
vXA = [f"v{152+u}" for u in range(4)]
vWA, vWB, vXR0, vXR1, vCSW, vCSR, vQST, vQXW, vF1, vBL, vQNW = (f"v{i}" for i in range(156, 167))
vSX = [f"v{168+i}" for i in range(3)]
vSS = [f"v{171+i}" for i in range(3)]
vPT = "v167"
e(f"v_lshrrev_b32 {vT0}, 3, {vLANE}")
e(f"v_and_b32 {vT1}, 7, {vLANE}")
e(f"v_xor_b32 {vT2}, {vT1}, {vT0}")
e(f"v_mul_u32_u24 {vT0}, 896, {vT0}")
e(f"v_lshl_add_u32 {vXO}, {vT2}, 4, {vT0}")
PROF_NAMES.append("start")
prof_n[0] = 1


def build_srds():
    e("s_waitcnt lgkmcnt(0)")
    if PROF:
        e("v_writelane_b32 v251, s42, 0")
    fstamp(55)
    srd(SRD_X, 16, 2048 * 896)
    srd(SRD_WS, 40, WS_BYTES)


def x_block_dma(sblk, tag=None):
    e(f"s_mul_i32 m0, {sblk}, {XB}")
    e(f"s_add_u32 m0, m0, {L_X}")
    e(f"s_lshl3_add_u32 {sT[2]}, {sG}, {sblk}")
    e(f"s_mul_i32 {sT[2]}, {sT[2]}, {8*896}")
    for i in range(7):
        dma(vXO, SRD_X, sT[2], 128 * i, tag=tag)
        if i < 6:
            e(f"s_addk_i32 m0, 896")


def x_block_ops(sblk_set, tag):
    def first():
        sblk_set()
        e(f"s_mul_i32 m0, {sBLK}, {XB}")
        e(f"s_add_u32 m0, m0, {L_X}")
        e(f"s_lshl3_add_u32 {sT[5]}, {sG}, {sBLK}")
        e(f"s_mul_i32 {sT[5]}, {sT[5]}, {8*896}")
        dma(vXO, SRD_X, sT[5], 0, tag=tag)

    def nxt(i):
        e(f"s_addk_i32 m0, 896")
        e("s_nop 0")
        dma(vXO, SRD_X, sT[5], 128 * i, tag=tag)
    return [first] + [lambda i=i: nxt(i) for i in range(1, 7)]


def stats_addr(k, sblk):
    e(f"s_mul_i32 {sT[2]}, {sblk}, {XB}")
    e(f"s_add_u32 {sT[2]}, {sT[2]}, {L_X}")
    e(f"v_add_u32 {vSX[k]}, {sT[2]}, {vL16}")
    e(f"s_lshl_b32 {sT[2]}, {sblk}, 6")
    e(f"s_add_u32 {sT[2]}, {sT[2]}, {L_STATS}")
    e(f"v_and_b32 {vSS[k]}, 0x38, {vLANE}")
    e(f"v_add_u32 {vSS[k]}, {sT[2]}, {vSS[k]}")


sRT, sHD = sT[0], sT[1]
sCT, sQH = sHD, sRT
sPIT, sLO0, sHI0, sLO1, sHI1, sD0, sDK, sDC, sJOB = sT[6:15]
PG, PPK, PV, RMB = 180, 212, 228, 180


def setup_kv():
    e(f"v_and_b32 {vT0}, 15, {vLANE}")
    e(f"v_lshrrev_b32 {vT1}, 4, {vLANE}")
    e(f"v_and_b32 {vT2}, 7, {vLANE}")
    e(f"v_xor_b32 {vXE}, {vT1}, {vT2}")
    e(f"v_lshlrev_b32 {vXE}, 4, {vXE}")
    e(f"v_lshl_add_u32 {vXE}, {vT2}, 7, {vXE}")
    e(f"v_lshrrev_b32 {vT2}, 3, {vT0}")
    e(f"s_lshl_b32 {sT[3]}, {sQ16}, 1")
    e(f"v_add_u32 {vT2}, {sT[3]}, {vT2}")
    e(f"v_mul_u32_u24 {vT2}, {XB}, {vT2}")
    e(f"v_add_u32 {vXE}, {vXE}, {vT2}")
    e(f"v_add_u32 {vXE}, {L_X}, {vXE}")
    e(f"v_xor_b32 {vXD}, 64, {vXE}")
    e(f"v_lshrrev_b32 {vT2}, 2, {vT0}")
    e(f"v_lshl_add_u32 {vT2}, {vT1}, 3, {vT2}")
    e(f"v_mul_u32_u24 {vT2}, 56, {vT2}")
    e(f"v_and_b32 {vWT}, 3, {vLANE}")
    e(f"v_lshl_add_u32 {vT2}, {vWT}, 3, {vT2}")
    e(f"s_lshl_b32 {sT[3]}, {sW}, 5")
    e(f"s_add_u32 {sT[3]}, {sT[3]}, {L_WKV}")
    e(f"v_add_u32 {vWT}, {sT[3]}, {vT2}")
    e(f"v_lshlrev_b32 {vT2}, 3, {vT0}")
    e(f"v_lshlrev_b32 {vST}, 5, {vT1}")
    e(f"s_cmp_eq_u32 {sKIND}, 0")
    e(f"s_cselect_b64 vcc, -1, 0")
    e(f"v_cndmask_b32 {vST}, {vST}, {vT2}, vcc")
    e(f"s_lshl_b32 {sT[3]}, {sQ16}, 7")
    e(f"s_add_u32 {sT[3]}, {sT[3]}, {L_STATS}")
    e(f"v_add_u32 {vST}, {sT[3]}, {vST}")
    e(f"v_bfe_u32 {vT2}, {vLANE}, 4, 1")
    e(f"v_lshl_add_u32 {vT0}, {vT2}, 5, {vT0}")
    e(f"v_lshlrev_b32 {vT0}, 4, {vT0}")
    e(f"v_lshrrev_b32 {vT1}, 5, {vLANE}")
    e(f"v_lshl_add_u32 {vKVO}, {vT1}, 3, {vT0}")
    e(f"s_and_b32 {sT[3]}, {sQ16}, 1")
    e(f"s_cmp_eq_u32 {sKIND}, 0")
    e(f"s_cselect_b32 {sT[4]}, {sW}, {sT[3]}")
    e(f"s_cselect_b32 {sT[5]}, {sT[3]}, {sW}")
    e(f"s_lshl_b32 {sT[4]}, {sT[4]}, 10")
    e(f"s_lshl_b32 {sT[5]}, {sT[5]}, 8")
    e(f"s_add_u32 {sT[4]}, {sT[4]}, {sT[5]}")
    e(f"s_lshl_b32 {sT[5]}, {sKIND}, 11")
    e(f"s_add_u32 {sT[4]}, {sT[4]}, {sT[5]}")
    e(f"s_lshl_b32 {sT[3]}, {sG}, 1")
    e(f"s_lshr_b32 {sT[5]}, {sQ16}, 1")
    e(f"s_add_u32 {sT[3]}, {sT[3]}, {sT[5]}")
    e(f"s_lshl_b32 {sT[3]}, {sT[3]}, 12")
    e(f"s_add_u32 {sT[4]}, {sT[4]}, {sT[3]}")
    e(f"s_add_u32 {sRET}, {sT[4]}, {WS_KV}")


def setup_q():
    e(f"v_and_b32 {vT0}, 7, {vLANE}")
    e(f"v_lshrrev_b32 {vT1}, 5, {vLANE}")
    e(f"v_xor_b32 {vT2}, {vT0}, {vT1}")
    e(f"s_lshl_b32 {sT[2]}, {sRT}, 2")
    e(f"v_xor_b32 {vT2}, {sT[2]}, {vT2}")
    e(f"v_lshlrev_b32 {vT2}, 4, {vT2}")
    e(f"v_lshl_add_u32 {vT2}, {vT0}, 7, {vT2}")
    e(f"v_bfe_u32 {vT0}, {vLANE}, 3, 2")
    e(f"v_add_u32 {vT0}, {sT[2]}, {vT0}")
    e(f"v_mul_u32_u24 {vT0}, {XB}, {vT0}")
    e(f"v_add_u32 {vXA[0]}, {vT0}, {vT2}")
    for u in range(1, 4):
        e(f"v_xor_b32 {vXA[u]}, {32*u}, {vXA[0]}")
    e(f"v_bfe_u32 {vT0}, {vLANE}, 2, 2")
    e(f"v_lshl_add_u32 {vT1}, {vT1}, 3, {vT0}")
    e(f"v_lshlrev_b32 {vT1}, 7, {vT1}")
    e(f"v_lshrrev_b32 {vT0}, 1, {vT0}")
    e(f"v_lshlrev_b32 {vT0}, 6, {vT0}")
    e(f"v_and_b32 {vT2}, 3, {vLANE}")
    e(f"v_lshl_add_u32 {vT0}, {vT2}, 3, {vT0}")
    e(f"v_bfe_u32 {vT2}, {vLANE}, 4, 1")
    e(f"v_lshl_add_u32 {vT0}, {vT2}, 5, {vT0}")
    e(f"s_lshl_b32 {sT[2]}, {sW}, 12")
    e(f"s_add_u32 {sT[2]}, {sT[2]}, {L_PPS}")
    e(f"v_add3_u32 {vPT}, {vT0}, {vT1}, {sT[2]}")
    e(f"s_mul_i32 {sT[2]}, {sHD}, 56")
    e(f"v_add_u32 {vT0}, {sT[2]}, {vT0}")
    e(f"v_and_b32 {vT0}, 127, {vT0}")
    e(f"v_add_u32 {vT0}, {vT0}, {vT1}")
    e(f"s_lshl_b32 {sT[2]}, {sRT}, 12")
    e(f"s_add_u32 {sT[3]}, {sT[2]}, {L_WQ}")
    e(f"v_add_u32 {vWA}, {sT[3]}, {vT0}")
    e(f"s_sub_u32 {sT[3]}, {L_WQ+4096}, {sT[2]}")
    e(f"v_add_u32 {vWB}, {sT[3]}, {vT0}")
    e(f"s_mul_i32 {sT[2]}, {sJ}, 112")
    e(f"s_lshl_b32 {sT[3]}, {sCT}, 6")
    e(f"s_add_u32 {sT[2]}, {sT[2]}, {sT[3]}")
    e(f"s_lshl_b32 {sT[3]}, {sQH}, 5")
    e(f"s_add_u32 {sC}, {sT[2]}, {sT[3]}")
    e(f"v_lshrrev_b32 {vT1}, 5, {vLANE}")
    e(f"v_lshlrev_b32 {vT1}, 3, {vT1}")
    e(f"v_and_b32 {vT0}, 7, {vLANE}")
    e(f"v_lshl_add_u32 {vT1}, {vT0}, 7, {vT1}")
    e(f"v_bfe_u32 {vT2}, {vLANE}, 3, 2")
    e(f"v_mul_u32_u24 {vT2}, {XB}, {vT2}")
    e(f"v_add_u32 {vT1}, {vT1}, {vT2}")
    for pc, dst in enumerate((vXR0, vXR1)):
        e(f"s_lshr_b32 {sT[2]}, {sC}, 4")
        if pc:
            e(f"s_add_u32 {sT[2]}, {sT[2]}, 1")
        e(f"s_and_b32 {sT[3]}, {sT[2]}, 7")
        e(f"s_lshr_b32 {sT[2]}, {sT[2]}, 3")
        e(f"s_lshl_b32 {sT[2]}, {sT[2]}, 10")
        e(f"v_xor_b32 {vT2}, {sT[3]}, {vT0}")
        e(f"v_lshl_add_u32 {vT2}, {vT2}, 4, {vT1}")
        e(f"v_add_u32 {dst}, {sT[2]}, {vT2}")
    e(f"s_lshl_b32 {sT[2]}, {sW}, 7")
    e(f"v_and_b32 {vT0}, 32, {vLANE}")
    e(f"v_lshl_add_u32 {vCSW}, {vT0}, 1, {sT[2]}")
    e(f"v_xor_b32 {vCSR}, 0x100, {vCSW}")
    e(f"v_and_b32 {vT0}, 31, {vLANE}")
    e(f"s_lshl_b32 {sT[2]}, {sRT}, 8")
    e(f"s_add_u32 {sT[2]}, {sT[2]}, {L_STATS}")
    e(f"v_lshl_add_u32 {vQST}, {vT0}, 3, {sT[2]}")
    e(f"s_lshl_b32 {sT[2]}, {sW}, 11")
    e(f"v_add_u32 {vQXW}, {sT[2]}, {vL16}")
    e(f"v_lshlrev_b32 {vF1}, 7, {vLANE}")
    e(f"v_lshlrev_b32 {vBL}, 2, {vLANE}")
    e(f"s_lshl_b32 {sT[2]}, {sW}, 8")
    e(f"v_add_u32 {vQNW}, {sT[2]}, {vBL}")
    for i in range(4):
        e(f"v_mov_b32 v{140+i}, 0x3f803f80")
    e("s_mov_b32 s98, 0")
    e("s_mov_b32 s99, -1")
    e(f"s_lshl_b32 {sKV}, {sW}, 16")
    e(f"s_add_u32 {sKV}, {sKV}, {WS_KV}")
    e(f"s_lshl_b32 {sKO[0]}, s2, 9")
    e(f"s_and_b32 {sKO[0]}, {sKO[0]}, 0xf000")
    e(f"s_mov_b32 {sKO[1]}, {sKO[0]}")


def setup_pp(u):
    e(f"s_lshl_b32 {sPIDX}, s2, 2")
    e(f"s_add_u32 {sPIDX}, {sPIDX}, {sW}")
    e(f"s_mov_b32 {sJOB}, 0")
    e(f"s_cmp_lt_u32 {sPIDX}, 448")
    e(f"s_cbranch_scc1 L_pp_w2_{u}")
    e(f"s_cmp_lt_u32 {sPIDX}, 840")
    e(f"s_cbranch_scc1 L_pp_w1_{u}")
    srd(SRD_PP, 24, 448 * 896)
    e(f"s_mov_b32 {sPIT}, 896")
    e(f"s_sub_u32 {sT[5]}, {sPIDX}, 840")
    e(f"s_lshr_b32 {sT[3]}, {sT[5]}, 4")
    e(f"s_and_b32 {sT[2]}, {sT[5]}, 15")
    e(f"s_mul_i32 {sLO0}, {sT[2]}, {28*896}")
    e(f"s_mul_i32 {sT[3]}, {sT[3]}, 112")
    e(f"s_add_u32 {sLO0}, {sLO0}, {sT[3]}")
    e(f"s_lshl_b32 {sD0}, {sT[5]}, 12")
    e(f"s_add_u32 {sD0}, {sD0}, {WS_WOF}")
    e(f"s_cmp_lt_u32 {sPIDX}, 968")
    e(f"s_cselect_b32 {sJOB}, 0, 1")
    e(f"s_branch L_pp_reg_{u}")
    g.label(f"L_pp_w2_{u}")
    srd(SRD_PP, 32, 1792 * 896)
    e(f"s_mov_b32 {sPIT}, 896")
    e(f"s_mul_i32 {sT[3]}, {sPIDX}, 1171")
    e(f"s_lshr_b32 {sT[3]}, {sT[3]}, 16")
    e(f"s_mul_i32 {sT[2]}, {sT[3]}, 56")
    e(f"s_sub_u32 {sT[2]}, {sPIDX}, {sT[2]}")
    e(f"s_mul_i32 {sLO0}, {sT[2]}, {32*896}")
    e(f"s_mul_i32 {sT[3]}, {sT[3]}, 112")
    e(f"s_add_u32 {sLO0}, {sLO0}, {sT[3]}")
    e(f"s_lshl_b32 {sD0}, {sPIDX}, 12")
    e(f"s_add_u32 {sD0}, {sD0}, {WS_W2F}")
    g.label(f"L_pp_reg_{u}")
    e(f"s_mov_b32 {sDK}, 2048")
    e(f"s_mov_b32 {sDC}, 1024")
    e(f"s_add_u32 {sHI0}, {sLO0}, {8*896}")
    e(f"s_add_u32 {sLO1}, {sLO0}, {16*896}")
    e(f"s_add_u32 {sHI1}, {sLO0}, {24*896}")
    e(f"s_branch L_pp_go_{u}")
    g.label(f"L_pp_w1_{u}")
    srd(SRD_PP, 28, 448 * 3584)
    e(f"s_mov_b32 {sPIT}, 3584")
    e(f"s_sub_u32 {sT[5]}, {sPIDX}, 448")
    e(f"s_mul_i32 {sDC}, {sT[5]}, 4682")
    e(f"s_lshr_b32 {sDC}, {sDC}, 16")
    e(f"s_mul_i32 {sT[2]}, {sDC}, 14")
    e(f"s_sub_u32 {sT[2]}, {sT[5]}, {sT[2]}")
    e(f"s_lshl_b32 {sT[2]}, {sT[2]}, 1")
    e(f"s_mul_i32 {sD0}, {sDC}, 56")
    e(f"s_add_u32 {sD0}, {sD0}, {sT[2]}")
    e(f"s_lshl_b32 {sD0}, {sD0}, 10")
    e(f"s_add_u32 {sD0}, {sD0}, {WS_W1F}")
    e(f"s_lshl_b32 {sT[5]}, {sDC}, 7")
    e(f"s_mov_b32 {sDK}, 1024")
    e(f"s_mov_b32 {sDC}, {28*1024}")
    for (lo, hi) in ((sLO0, sHI0), (sLO1, sHI1)):
        e(f"s_mul_i32 {sT[3]}, {sT[2]}, 9363")
        e(f"s_lshr_b32 {sT[3]}, {sT[3]}, 16")
        e(f"s_mul_i32 {sT[3]}, {sT[3]}, 7")
        e(f"s_sub_u32 {sT[3]}, {sT[2]}, {sT[3]}")
        e(f"s_lshl_b32 {lo}, {sT[2]}, 4")
        e(f"s_cmp_gt_u32 {sT[3]}, 3")
        e(f"s_cselect_b32 {sT[4]}, 8, 0")
        e(f"s_sub_u32 {lo}, {lo}, {sT[4]}")
        e(f"s_cmp_eq_u32 {sT[3]}, 3")
        e(f"s_cselect_b32 {sT[4]}, 56, 8")
        e(f"s_add_u32 {hi}, {lo}, {sT[4]}")
        e(f"s_mul_i32 {lo}, {lo}, 3584")
        e(f"s_mul_i32 {hi}, {hi}, 3584")
        e(f"s_add_u32 {lo}, {lo}, {sT[5]}")
        e(f"s_add_u32 {hi}, {hi}, {sT[5]}")
        e(f"s_add_u32 {sT[2]}, {sT[2]}, 1")
    g.label(f"L_pp_go_{u}")
    e(f"v_bfe_u32 {vT0}, {vLANE}, 3, 2")
    e(f"v_mul_lo_u32 {vT0}, {vT0}, {sPIT}")
    e(f"v_bfe_u32 {vT1}, {vLANE}, 4, 1")
    e(f"v_lshl_add_u32 {vT1}, {vT1}, 2, {vLANE}")
    e(f"v_and_b32 {vT1}, 7, {vT1}")
    e(f"v_lshl_add_u32 {vT0}, {vT1}, 4, {vT0}")
    for kk, (lo, hi) in enumerate(((sLO0, sHI0), (sLO1, sHI1))):
        e(f"s_sub_u32 {hi}, {hi}, {lo}")
        e(f"v_add_u32 {vT1}, {hi}, {vT0}")
        e(f"v_cndmask_b32 v{PV+kk}, {vT0}, {vT1}, {sMASKH}")
    e(f"s_lshl_b32 {sPIT}, {sPIT}, 2")


def setup_bases():
    e(f"s_lshl_b32 {sT[2]}, {sG}, 16")
    e(f"s_add_u32 {sT[3]}, {sT[2]}, {WS_OF}")
    e(f"s_lshl_b32 {sOFW}, {sRT}, 15")
    e(f"s_lshl_b32 {sT[4]}, {sJ}, 12")
    e(f"s_add_u32 {sOFW}, {sOFW}, {sT[4]}")
    e(f"s_lshl_b32 {sT[4]}, {sHD}, 11")
    e(f"s_add_u32 {sOFW}, {sOFW}, {sT[4]}")
    e(f"s_add_u32 {sOFW}, {sOFW}, {sT[3]}")
    e(f"s_lshl_b32 {sOFR}, {sW}, 13")
    e(f"s_add_u32 {sOFR}, {sOFR}, {sT[3]}")
    e(f"s_add_u32 {sT[3]}, {sT[2]}, {WS_HF}")
    e(f"s_lshl_b32 {sT[4]}, {sCT}, 1")
    e(f"s_add_u32 {sT[4]}, {sT[4]}, {sQH}")
    e(f"s_lshl_b32 {sT[5]}, {sKIND}, 12")
    e(f"s_lshl_b32 {sT[15]}, {sKIND}, 9")
    e(f"s_cmp_eq_u32 {sT[4]}, 3")
    e(f"s_cselect_b32 {sT[5]}, {sT[15]}, {sT[5]}")
    e(f"s_lshl_b32 {sT[4]}, {sT[4]}, 10")
    e(f"s_add_u32 {sHFW}, {sT[4]}, {sT[5]}")
    e(f"s_mul_i32 {sT[4]}, {sQ16}, 7168")
    e(f"s_add_u32 {sHFW}, {sHFW}, {sT[4]}")
    e(f"s_add_u32 {sHFW}, {sHFW}, {sT[3]}")
    e(f"s_mul_i32 {sHFR}, {sCT}, {28*1024}")
    e(f"s_mul_i32 {sT[4]}, {sQH}, {14*1024}")
    e(f"s_add_u32 {sHFR}, {sHFR}, {sT[4]}")
    e(f"s_add_u32 {sHFR}, {sHFR}, {sT[3]}")
    e(f"s_mul_i32 {sT[3]}, {sG}, {224*1024}")
    e(f"s_add_u32 {sT[3]}, {sT[3]}, {WS_HID}")
    e(f"s_mul_i32 {sHIDW}, {sJ}, {14*1024}")
    e(f"s_lshl_b32 {sT[4]}, {sW}, 12")
    e(f"s_add_u32 {sHIDW}, {sHIDW}, {sT[4]}")
    e(f"s_add_u32 {sHIDW}, {sHIDW}, {sT[3]}")
    e(f"s_mul_i32 {sHIDR}, {sW}, {28*1024}")
    e(f"s_add_u32 {sHIDR}, {sHIDR}, {sT[3]}")
    e(f"s_lshl_b32 {sWOB}, {sJ}, 16")
    e(f"s_lshl_b32 {sT[4]}, {sW}, 14")
    e(f"s_add_u32 {sWOB}, {sWOB}, {sT[4]}")
    e(f"s_add_u32 {sWOB}, {sWOB}, {WS_WOF}")
    e(f"s_mul_i32 {sW1B}, {sJ}, 7")
    e(f"s_lshl_b32 {sT[4]}, {sW}, 1")
    e(f"s_add_u32 {sW1B}, {sW1B}, {sT[4]}")
    e(f"s_mul_i32 {sW1B}, {sW1B}, {28*1024}")
    e(f"s_add_u32 {sW1B}, {sW1B}, {WS_W1F}")
    e(f"s_mul_i32 {sW2B}, {sJ}, {224*1024}")
    e(f"s_mul_i32 {sT[4]}, {sW}, {56*1024}")
    e(f"s_add_u32 {sW2B}, {sW2B}, {sT[4]}")
    e(f"s_add_u32 {sW2B}, {sW2B}, {WS_W2F}")
    e(f"s_lshl_b32 {sT[4]}, {sQH}, 8")
    e(f"s_lshl_b32 {sT[5]}, {sCT}, 10")
    e(f"s_or_b32 {sT[4]}, {sT[4]}, {sT[5]}")
    e(f"v_xor_b32 {vW2A}, {sT[4]}, {vL16}")
    e(f"v_xor_b32 {vT3}, 0x400, {vW2A}")
    e(f"s_lshl_b32 {sT[5]}, {sJ}, 16")
    e(f"s_sub_u32 {sT[5]}, {WS_RM - WS_WOF:#x}, {sT[5]}")
    e(f"v_lshrrev_b32 {vT0}, 5, {vLANE}")
    e(f"v_lshl_add_u32 {vT0}, {vT0}, 4, {sT[5]}")
    e(f"v_and_b32 {vT1}, 0x5f0, {vW2A}")
    e(f"v_cmp_eq_u32 vcc, {1024+24*16:#x}, {vT1}")
    e(f"v_cndmask_b32 {vWOA0}, {vW2A}, {vT0}, vcc")
    e(f"v_and_b32 {vT1}, 0x5f0, {vT3}")
    e(f"v_cmp_eq_u32 vcc, {1024+24*16:#x}, {vT1}")
    e(f"v_cndmask_b32 {vWOA1}, {vT3}, {vT0}, vcc")
    e(f"s_cmp_eq_u32 {sW}, 3")
    e(f"s_cselect_b32 {sT[4]}, {OOB:#x}, 0")
    e(f"v_add_u32 {vW1B}, {sT[4]}, {vL16}")
    e(f"s_mul_i32 {sT[2]}, {sW}, 12288")
    e(f"v_add_u32 {vEXC}, {sT[2]}, {vL16}")
    for i in range(4):
        e(f"v_mov_b32 v{SENT+i}, -1")
    srd(SRD_OUT, 36, 2048 * 896)
    e(f"s_lshl1_add_u32 {sT[4]}, s3, {sJ}")
    e(f"s_cmp_ge_u32 {sT[4]}, 7")
    e(f"s_cselect_b32 {sT[3]}, 7, 0")
    e(f"s_sub_u32 {sT[2]}, {sT[4]}, {sT[3]}")
    for i in range(7):
        e(f"s_cmp_ge_u32 {sT[2]}, 7")
        e(f"s_cselect_b32 {sT[3]}, 7, 0")
        e(f"s_sub_u32 {sT[2]}, {sT[2]}, {sT[3]}")
        e(f"s_lshl_b32 {sROT7[i]}, {sT[2]}, 12")
        e(f"s_add_u32 {sT[2]}, {sT[2]}, 1")
    for i in range(8):
        e(f"s_add_u32 {sT[2]}, {sT[4]}, {i}")
        e(f"s_and_b32 {sT[2]}, {sT[2]}, 7")
        e(f"s_lshl_b32 {sROT8[i]}, {sT[2]}, 10")


def pp_gather(u):
    e(f"s_cmp_lg_u32 {sJOB}, 0")
    e(f"s_cbranch_scc1 L_pp_rm_{u}")
    stA = g.state()
    e(f"s_lshl_b32 {sT[2]}, {sW}, 12")
    e(f"s_add_u32 m0, {sT[2]}, {L_PPS}")
    for kk, lo in enumerate((sLO0, sLO1)):
        for h in range(2):
            if h:
                e(f"s_add_u32 {lo}, {lo}, {sPIT}")
            else:
                e("s_nop 0")
            dma(f"v{PV+kk}", SRD_PP, lo, tag="pp")
            e(f"s_addk_i32 m0, 1024")
    e(f"s_branch L_pp_done_{u}")
    stA2 = g.state()
    g.set_state(stA)
    g.label(f"L_pp_rm_{u}")
    e(f"s_sub_u32 {sT[4]}, {sPIDX}, 968")
    e(f"s_lshr_b32 {sT[3]}, {sT[4]}, 1")
    e(f"s_mul_i32 {sT[3]}, {sT[3]}, 28")
    e(f"s_and_b32 {sT[2]}, {sT[4]}, 1")
    e(f"s_lshl_b32 {sT[2]}, {sT[2]}, 4")
    e(f"s_add_u32 {sT[3]}, {sT[3]}, {sT[2]}")
    e(f"v_bfe_u32 {vT0}, {vLANE}, 2, 2")
    e(f"v_bfe_u32 {vT1}, {vLANE}, 4, 1")
    e(f"v_lshl_add_u32 {vT0}, {vT1}, 3, {vT0}")
    e(f"v_lshrrev_b32 {vT1}, 5, {vLANE}")
    e(f"v_lshl_add_u32 {vT0}, {vT1}, 2, {vT0}")
    e(f"v_add_u32 {vT0}, {sT[3]}, {vT0}")
    e(f"v_mul_u32_u24 {vT0}, 896, {vT0}")
    e(f"v_and_b32 {vT1}, 3, {vLANE}")
    e(f"v_lshl_add_u32 {vT0}, {vT1}, 4, {vT0}")
    for i in range(14):
        e(f"buffer_load_dwordx4 {vr(RMB+4*i,4)}, {vT0}, {SRD_PP}, 0 offen offset:{i*64}", tag="pp")
    g.join([stA2, g.state()])
    g.label(f"L_pp_done_{u}")


e(f"s_lshr_b32 {sRT}, {sW}, 1")
e(f"s_and_b32 {sHD}, {sW}, 1")
sBLK = sT[15]
e(f"s_lshl1_add_u32 {sBLK}, {sQ16}, {sHD}")
build_srds()
e(f"s_cmp_lt_u32 {sW}, 2")
e("s_cbranch_scc1 L_p1_A")
st0 = g.state()
x_block_dma(sBLK, tag="crit")
e("s_branch L_p1_B")
stB0 = g.state()
g.set_state(st0)
g.label("L_p1_A")
srd(SRD_DBG, 38, 256)
e(f"s_or_b32 {sT[2]}, s2, {sW}")
e(f"s_cmp_lg_u32 {sT[2]}, 0")
e("s_cbranch_scc1 L_p1_nst")
stA = g.state()
e("s_memrealtime s[66:67]")
e("s_waitcnt lgkmcnt(0)")
e("s_or_b32 s66, s66, 1")
e(f"v_mov_b32 {vNP}, s66")
e("s_mov_b64 exec, 1")
e(f"buffer_store_dword {vNP}, {vZERO}, {SRD_DBG}, 0 offen sc1")
e("s_mov_b64 exec, -1")
g.join([stA, g.state()])
g.label("L_p1_nst")
e(f"s_cmp_eq_u32 {sKIND}, 0")
e("s_cselect_b32 s48, s20, s22")
e("s_cselect_b32 s49, s21, s23")
e("s_and_b32 s49, s49, 0xffff")
e(f"s_movk_i32 s50, {448*56}")
e("s_mov_b32 s51, 0x20000")
e(f"s_lshr_b32 {sT[4]}, s2, 4")
e(f"s_mul_i32 {sT[3]}, {sT[4]}, 86")
e(f"s_lshr_b32 {sT[3]}, {sT[3]}, 8")
e(f"s_mul_i32 {sT[3]}, {sT[3]}, 3")
e(f"s_sub_u32 {sT[4]}, {sT[4]}, {sT[3]}")
e(f"s_lshl_b32 {sT[4]}, {sT[4]}, 12")
e(f"s_mul_i32 {sT[5]}, {sW}, 12288")
for grp in range(3):
    e(f"s_add_u32 {sT[2]}, {sT[4]}, {sT[5]}")
    e(f"s_add_u32 m0, {sT[2]}, {L_WKV}")
    if grp < 2:
        e(f"s_addk_i32 {sT[4]}, 4096")
        e(f"s_cmpk_eq_u32 {sT[4]}, 12288")
        e(f"s_cselect_b32 {sT[4]}, 0, {sT[4]}")
    else:
        e("s_nop 0")
    for i in range(4):
        dma(vL16, SRD_WKV, sT[2], i * 1024)
    if grp == 0:
        fstamp(56)
e(f"s_add_u32 {sT[2]}, {sT[5]}, 12288")
e(f"s_add_u32 m0, {sT[2]}, {L_WKV}")
e("s_nop 0")
dma(vL16, SRD_WKV, sT[2], tag="crit")
srd(SRD_WQ, 18, 448 * 896)
e(f"s_lshr_b32 {sT[3]}, s2, 3")
e(f"s_lshl1_add_u32 {sT[3]}, {sT[3]}, {sW}")
e(f"s_mul_i32 {sT[3]}, {sT[3]}, {49*128}")
e(f"v_min_u32 {vT0}, 48, {vLANE}")
e(f"v_lshlrev_b32 {vT0}, 7, {vT0}")
e(f"buffer_load_dword v233, {vT0}, {SRD_WQ}, {sT[3]} offen")
fstamp(50)
setup_kv()
e(f"s_lshl1_add_u32 {sBLK}, {sW}, {sBLK}")
for m in range(3):
    e(f"s_add_u32 {sT[3]}, {sBLK}, {2+m}")
    e(f"s_and_b32 {sT[3]}, {sT[3]}, 7")
    stats_addr(m, sT[3])
e(f"s_add_u32 {sBLK}, {sBLK}, 1")
e(f"s_mov_b32 s67, {sRET}")
setup_q()
setup_pp("a")
e(f"s_and_b32 {sFLG1}, s2, 63")
e(f"s_lshl_b32 {sFLG1}, {sFLG1}, 7")
e(f"s_lshr_b32 {sT[2]}, s2, 6")
e(f"s_lshl3_add_u32 {sFLG1}, {sT[2]}, {sFLG1}")
for i in range(4):
    e(f"v_mov_b32 v{28+i}, 0")
e(f"ds_write_b128 {vZERO}, v[28:31] offset:{L_MISC}")
e(f"ds_write_b128 {vZERO}, v[28:31] offset:{L_MISC+16}")
e(f"s_mov_b32 {sSPIN}, 0")
e(f"buffer_load_dword {vNP}, {vZERO}, {SRD_DBG}, 0 offen sc1")
fstamp(51)
g.wait_tag("crit")
fstamp(52)
g.barrier()
stamp("B1")
XF, WF = 28, 84
ACC16, CS16, ONES = vr(144, 4), vr(148, 4), vr(140, 4)


def kv_reads(t):
    e(f"ds_read_b128 {vr(XF+4*t,4)}, {vXE if t%2==0 else vXD} offset:{(t>>1)*1024}")
    for h in range(2):
        e(f"ds_read_b64_tr_b16 {vr(WF+4*t+2*h,2)}, {vWT} offset:{t*1792+h*224}")


def blk_next():
    e(f"s_add_u32 {sBLK}, {sBLK}, 1")
    e(f"s_and_b32 {sBLK}, {sBLK}, 7")


def xrest_ops():
    return sum([x_block_ops(blk_next, "xrest") for m in range(3)], [])


for t in range(5):
    kv_reads(t)
e(f"s_cmp_lg_u32 {sKIND}, 0")
e("s_cbranch_scc1 L_p1_vk")
stK = g.state()
xo = xrest_ops()
for t in range(14):
    if t + 5 < 14:
        kv_reads(t + 5)
    mfma16(ACC16, vr(WF + 4 * t, 4), vr(XF + 4 * t, 4), ACC16 if t else "0")
    mfma16(CS16, vr(WF + 4 * t, 4), ONES, CS16 if t else "0")
    for op in xo[(3 * t + 1) // 2:(3 * t + 4) // 2]:
        op()
e(f"s_lshl_b32 {sT[3]}, {sW}, 16")
e(f"s_mul_i32 {sT[3]}, {sT[3]}, 0xffff")
e(f"s_mov_b32 vcc_lo, 0")
e(f"s_mov_b32 vcc_hi, {sT[3]}")
g.barrier()
e(f"ds_read_b64 v[28:29], {vST}")
for r in range(4):
    e(f"v_fma_f32 v{144+r}, -v28, v{148+r}, v{144+r}")
for r in range(4):
    e(f"v_mul_f32 v{144+r}, v29, v{144+r}")
for r in range(4):
    e(f"v_cndmask_b32 v{144+r}, v{144+r}, {vZERO}, vcc")
e("v_cvt_pk_bf16_f32 v148, v144, v145")
e("v_cvt_pk_bf16_f32 v149, v146, v147")
e(f"buffer_store_dwordx2 v[148:149], {vKVO}, {SRD_WS}, s67 offen sc1", tag="kvst")
e("v_max3_f32 v150, abs(v144), abs(v145), abs(v146)")
e("v_max_f32 v150, v150, abs(v147)")
e("s_branch L_p1_kvst")
stK2 = g.state()
g.set_state(stK)
g.label("L_p1_vk")
xo = xrest_ops()
for t in range(14):
    if t + 5 < 14:
        kv_reads(t + 5)
    mfma16(ACC16, vr(XF + 4 * t, 4), vr(WF + 4 * t, 4), ACC16 if t else "0")
    mfma16(CS16, ONES, vr(WF + 4 * t, 4), CS16 if t else "0")
    for op in xo[(3 * t + 1) // 2:(3 * t + 4) // 2]:
        op()
e(f"v_and_b32 {vT0}, 15, {vLANE}")
e(f"s_lshl_b32 {sT[3]}, {sW}, 4")
e(f"v_add_u32 {vT0}, {sT[3]}, {vT0}")
e(f"v_cmp_lt_u32 vcc, 27, {vT0}")
e(f"v_cmp_eq_u32 s[72:73], 28, {vT0}")
g.barrier()
e(f"ds_read_b128 v[32:35], {vST}")
e(f"ds_read_b128 v[36:39], {vST} offset:16")
for r in range(4):
    e(f"v_fma_f32 v{144+r}, -v{32+2*r}, v{148+r}, v{144+r}")
for r in range(4):
    e(f"v_mul_f32 v{144+r}, v{33+2*r}, v{144+r}")
e("v_cvt_pk_bf16_f32 v148, v144, v145")
e("v_cvt_pk_bf16_f32 v149, v146, v147")
e(f"v_cndmask_b32 v148, v148, {vZERO}, vcc")
e(f"v_cndmask_b32 v149, v149, {vZERO}, vcc")
e(f"v_cndmask_b32 v148, v148, v140, s[72:73]")
e(f"v_cndmask_b32 v149, v149, v140, s[72:73]")
e(f"buffer_store_dwordx2 v[148:149], {vKVO}, {SRD_WS}, s67 offen sc1", tag="kvst")
e("v_mov_b32 v150, 0")
g.join([stK2, g.state()])
g.label("L_p1_kvst")
stamp("kvstore")
wave_max_u32("v150", sT[5], sT[4])
e(f"v_mov_b32 v150, {sT[4]}")
e(f"ds_max_u32 {vZERO}, v150 offset:{L_MISC+16}")
g.label("L_p1_nchk")
e(f"v_readfirstlane_b32 {sNONCE}, {vNP}")
e(f"s_cmp_lg_u32 {sNONCE}, 0")
e("s_cbranch_scc1 L_p1_ngot")
stA = g.state()
spin_guard("L_p1_ngot")
e(f"buffer_load_dword {vNP}, {vZERO}, {SRD_DBG}, 0 offen sc1")
e("s_waitcnt vmcnt(0)")
e("s_branch L_p1_nchk")
g.set_state(stA)
g.label("L_p1_ngot")
if PROF:
    e(f"v_writelane_b32 v251, {sSPIN}, 62")
e(f"ds_write_b32 {vZERO}, {vNP} offset:{L_MISC}")
pp_gather("a")
g.wait_tag("xrest")
row_stats_multi([(vSX[0], 28, vSS[0])])
fstamp(53)
g.wait_tag("kvst")
fstamp(54)
last_wave_signal_begin(4, "v150")
e(f"ds_read_b32 v149, {vZERO} offset:{L_MISC+16}")
e(f"v_mov_b32 v148, {sNONCE}")
e(f"v_readfirstlane_b32 {sT[2]}, v150")
e(f"s_cmp_lg_u32 {sT[2]}, 1")
e("s_cbranch_scc1 L_p1_nofl")
stB = g.state()
e("s_mov_b64 exec, 1")
e(f"buffer_store_dwordx2 v[148:149], {vZERO}, {SRD_WS}, {sFLG1} offen sc1")
e("s_mov_b64 exec, -1")
g.join([stB, g.state()])
g.label("L_p1_nofl")
row_stats_multi([(vSX[1], 28, vSS[1]), (vSX[2], 64, vSS[2])])
e("s_branch L_p1_b3")
stW01 = g.state()

g.set_state(stB0)
g.label("L_p1_B")
fstamp(50)
stats_addr(0, sBLK)
srd(SRD_WQ, 18, 448 * 896)
srd(SRD_B, 30, 1792 * 2)
srd(SRD_DBG, 34, 448 * 2)
e(f"s_mul_i32 {sT[2]}, {sJ}, 448")
e(f"s_lshl_b32 {sT[3]}, {sHD}, 8")
e(f"s_add_u32 {sT[2]}, {sT[2]}, {sT[3]}")
e(f"v_lshlrev_b32 {vT0}, 1, {vLANE}")
e(f"v_add_u32 {vT1}, {sT[2]}, {vT0}")
e(f"buffer_load_ushort v240, {vT1}, {SRD_B}, 0 offen")
e(f"buffer_load_ushort v241, {vT1}, {SRD_B}, 0 offen offset:128")
e(f"s_mul_i32 {sT[2]}, {sJ}, 112")
e(f"v_add_u32 {vT1}, {sT[2]}, {vT0}")
e(f"buffer_load_ushort v242, {vT1}, {SRD_DBG}, 0 offen")
e(f"v_lshrrev_b32 {vT0}, 3, {vLANE}")
e(f"v_bfe_u32 {vT1}, {vLANE}, 4, 1")
e(f"v_lshl_add_u32 {vT1}, {vT1}, 2, {vLANE}")
e(f"v_and_b32 {vT1}, 7, {vT1}")
e(f"v_mul_u32_u24 {vT0}, 896, {vT0}")
e(f"v_lshl_add_u32 {vWQO}, {vT1}, 4, {vT0}")
setup_q()
setup_pp("b")
fstamp(51)
g.wait_tag("crit")
fstamp(52)
g.barrier()
prof_n[0] = 1
del PROF_NAMES[1:]
stamp("B1")
row_stats_multi([(vSX[0], 28, vSS[0])])
g.barrier()
stamp("kvstore")
e(f"s_mul_i32 {sT[4]}, {sJ}, 112")
e(f"s_mul_i32 {sT[3]}, {sHD}, {28*8*896}")
e(f"s_add_u32 {sT[4]}, {sT[4]}, {sT[3]}")
e(f"s_mul_i32 {sT[5]}, {sHD}, {28*1024}")
e(f"s_add_u32 {sT[5]}, {sT[5]}, {L_WQ}")
e(f"s_mov_b32 m0, {sT[5]}")
e("s_nop 0")
for b in range(28):
    dma(vWQO, SRD_WQ, sT[4], tag="wq")
    if b < 27:
        e(f"s_addk_i32 m0, 1024")
        e(f"s_addk_i32 {sT[4]}, {8*896}")
pp_gather("b")
fstamp(53)
e(f"s_lshl_b32 {sT[2]}, {sHD}, 9")
e(f"v_add_u32 {vT1}, {sT[2]}, {vBL}")
for i in range(3):
    e(f"v_lshlrev_b32 v{240+i}, 16, v{240+i}")
e(f"ds_write_b32 {vT1}, v240 offset:{L_B1}")
e(f"ds_write_b32 {vT1}, v241 offset:{L_B1+256}")
e(f"ds_write_b32 {vBL}, v242 offset:{L_B2}")
g.wait_tag("wq")
fstamp(54)
g.join([stW01, g.state()])
g.label("L_p1_b3")
stamp("preB3")
g.barrier()
stamp("B3")
if PROF:
    e("s_memrealtime s[42:43]")
    e("s_waitcnt lgkmcnt(0)")
    e("v_writelane_b32 v251, s42, 60")
    stamp("B3rt")
QACC, QCS, QX_, QW_ = 104, 120, 32, 64


def q_loads(t):
    seg, u = t >> 2, t & 3
    e(f"ds_read_b128 {vr(QX_+4*(t%8),4)}, {vXA[u]} offset:{L_X+seg*1024}")
    for h in range(2):
        e(f"ds_read_b64_tr_b16 {vr(QW_+4*(t%8)+2*h,2)}, {vWA if u<2 else vWB} offset:{seg*8192+(u&1)*2048+h*512}")


def pp_store(u=""):
    e(f"s_cmp_lg_u32 {sJOB}, 0")
    e(f"s_cbranch_scc1 L_pp_rm2{u}")
    stA = g.state()
    g.wait_tag("pp")
    e(f"v_xor_b32 {vT0}, 64, {vPT}")
    for i in range(4):
        for h in range(2):
            e(f"ds_read_b64_tr_b16 {vr(PPK+4*i+2*h,2)}, {vT0 if i&1 else vPT} offset:{(i>>1)*2048+h*512}")
    e(f"s_add_u32 {sT[2]}, {sD0}, {sDC}")
    e(f"s_add_u32 {sT[3]}, {sD0}, {sDK}")
    e(f"s_add_u32 {sT[4]}, {sT[3]}, {sDC}")
    for i, so in enumerate((sD0, sT[2], sT[3], sT[4])):
        st4(vr(PPK + 4 * i, 4), vL16, so, tag="ppst")
    e(f"s_branch L_pp_done2{u}")
    stA2 = g.state()
    g.set_state(stA)
    g.label(f"L_pp_rm2{u}")
    e(f"s_cmp_ge_u32 {sPIDX}, 1000")
    e(f"s_cbranch_scc1 L_pp_done2{u}")
    stB = g.state()
    e("v_mov_b32 v238, 0x3f803f80")
    for i in range(56):
        a = "v236" if i % 2 == 0 else "v237"
        e(f"v_dot2_f32_bf16 {a}, v{RMB+i}, v238, {a if i >= 2 else '0'}")
    e("v_add_f32 v236, v236, v237")
    for m in ("quad_perm:[1,0,3,2]", "quad_perm:[2,3,0,1]"):
        e(f"v_add_f32_dpp v236, v236, v236 {m} row_mask:0xf bank_mask:0xf")
    e(f"v_mul_f32 v236, {f2u(1/448):#x}, v236")
    e("v_cvt_pk_bf16_f32 v236, v236, v236")
    e(f"v_lshrrev_b32 {vT0}, 2, {vLANE}")
    e(f"v_lshlrev_b32 {vT0}, 1, {vT0}")
    e(f"s_sub_u32 {sT[2]}, {sPIDX}, 968")
    e(f"s_lshl_b32 {sT[2]}, {sT[2]}, 11")
    e(f"s_add_u32 {sT[2]}, {sT[2]}, {WS_RM}")
    e("s_mov_b32 s72, 0x11111111")
    e("s_mov_b32 s73, 0x11111111")
    e("s_mov_b64 exec, s[72:73]")
    e(f"buffer_store_short v236, {vT0}, {SRD_WS}, {sT[2]} offen sc1", tag="ppst")
    e("s_mov_b64 exec, -1")
    g.join([stA2, stB, g.state()])
    g.label(f"L_pp_done2{u}")


def flag_off(base, dst):
    e(f"s_and_b32 {dst}, s2, 63")
    e(f"s_lshl_b32 {dst}, {dst}, 7")
    e(f"s_lshr_b32 {sT[3]}, s2, 6")
    e(f"s_lshl_b32 {sT[3]}, {sT[3]}, 2")
    e(f"s_add_u32 {dst}, {dst}, {sT[3]}")
    e(f"s_add_u32 {dst}, {dst}, {base}")


def signal_end(vtmp, which, uniq):
    e(f"v_readfirstlane_b32 {sT[2]}, {vtmp}")
    e(f"s_cmp_lg_u32 {sT[2]}, 3")
    e(f"s_cbranch_scc1 L_sig_{uniq}")
    st = g.state()
    if which == 2:
        flag_off(WS_FLAG2, sT[2])
    else:
        e(f"s_lshl_b32 {sT[2]}, {sG}, 7")
        e(f"s_lshl_b32 {sT[3]}, {sJ}, 2")
        e(f"s_add_u32 {sT[2]}, {sT[2]}, {sT[3]}")
        e(f"s_add_u32 {sT[2]}, {sT[2]}, {WS_FLAG3}")
    e(f"v_mov_b32 {vtmp}, {sNONCE}")
    e("s_mov_b64 exec, 1")
    e(f"buffer_store_dword {vtmp}, {vZERO}, {SRD_WS}, {sT[2]} offen sc1")
    e("s_mov_b64 exec, -1")
    g.join([st, g.state()])
    g.label(f"L_sig_{uniq}")


order = [t for t in range(28) if (t & 3) < 2] + [t for t in range(28) if (t & 3) >= 2]


def q_loads_n(n):
    t = order[n]
    seg, u = t >> 2, t & 3
    e(f"ds_read_b128 {vr(QX_+4*(n%8),4)}, {vXA[u]} offset:{L_X+seg*1024}")
    for h in range(2):
        e(f"ds_read_b64_tr_b16 {vr(QW_+4*(n%8)+2*h,2)}, {vWA if u<2 else vWB} offset:{seg*8192+(u&1)*2048+h*512}")


def poll1_issue():
    ld4("v[96:99]", vF1, "0")
    ld4("v[100:103]", vF1, "0", 16)


for n in range(4):
    q_loads_n(n)
CSP = 144
csp = [144 + i for i in range(8)] + [168 + i for i in range(8)]
QSCALE = 28 ** -0.5 * 1.4426950408889634
for n in range(28):
    if n + 4 < 28:
        q_loads_n(n + 4)
    mfma32(vr(QACC, 16), vr(QW_ + 4 * (n % 8), 4), vr(QX_ + 4 * (n % 8), 4), vr(QACC, 16) if n else "0")
    if n < 14:
        mfma32(vr(QCS, 16), vr(QW_ + 4 * (n % 8), 4), ONES, vr(QCS, 16) if n else "0")
    if n == 2:
        for rt in range(2):
            e(f"ds_read_b64 {vr(XRES+4*rt,2)}, {vXR0} offset:{L_X+rt*4*XB}")
            e(f"ds_read_b64 {vr(XRES+4*rt+2,2)}, {vXR1} offset:{L_X+rt*4*XB}")
        e(f"ds_read_b64 v[136:137], {vQST}")
    if n == 9:
        e(f"s_cmp_lg_u32 {sW}, 0")
        e("s_cbranch_scc1 L_p1_np")
        stA = g.state()
        poll1_issue()
        g.join([stA, g.state()])
        g.label("L_p1_np")
    if n == 24:
        e(f"ds_read_b32 {vT5}, {vZERO} offset:{L_MISC}")
    if n == 27:
        e(f"v_readfirstlane_b32 {sNONCE}, {vT5}")
    if n == 6:
        e(f"v_mul_f32 v137, {f2u(QSCALE):#x}, v137")
        e(f"v_mul_f32 v136, v136, v137")
    if 16 <= n < 20:
        e("s_mov_b32 exec_lo, 1")
        e("s_mov_b32 exec_hi, 1")
        e(f"ds_write_b128 {vCSW}, {vr(QCS+4*(n-16),4)} offset:{L_CSX+(n-16)*16}")
        e("s_mov_b64 exec, -1")
    if n == 20:
        g.barrier()
        for i in range(4):
            e(f"ds_read_b128 {vr(csp[4*i],4)}, {vCSR} offset:{L_CSX+i*16}")
    if 23 <= n < 27:
        for r in range(4 * (n - 23), 4 * (n - 23) + 4):
            e(f"v_add_f32 v{QCS+r}, v{QCS+r}, v{csp[r]}")
            e(f"v_mul_f32 v{QCS+r}, v136, v{QCS+r}")
stamp("qgemm")
for r in range(16):
    e(f"v_fma_f32 v{QACC+r}, v{QACC+r}, v137, -v{QCS+r}")
for r in range(12, 16):
    e(f"v_cndmask_b32 v{QACC+r}, v{QACC+r}, {vZERO}, {sMASKH}")
for r in range(8):
    e(f"v_cvt_pk_bf16_f32 v{48+r}, v{QACC+2*r}, v{QACC+2*r+1}")
e(f"ds_write_b128 {vQXW}, v[48:51] offset:{L_QX}")
e(f"ds_write_b128 {vQXW}, v[52:55] offset:{L_QX+1024}")
e(f"v_add_f32 v58, abs(v{QACC}), abs(v{QACC+1})")
e(f"v_add_f32 v59, abs(v{QACC+2}), abs(v{QACC+3})")
for r in range(4, 16, 2):
    e(f"v_add_f32 v58, v58, abs(v{QACC+r})")
    e(f"v_add_f32 v59, v59, abs(v{QACC+r+1})")
e("v_add_f32 v58, v58, v59")
e(f"ds_write_b32 {vQNW}, v58 offset:{L_QN}")
e(f"s_cmp_lg_u32 {sW}, 0")
e("s_cbranch_scc1 L_p1_b5")
stA = g.state()
e(f"s_mov_b32 {sSPIN}, 0")
g.label("L_f1_chk")
g.wait_regs("v[96:103]")
e(f"v_xor_b32 v96, {sNONCE}, v96")
e(f"v_xor_b32 v98, {sNONCE}, v98")
e(f"v_xor_b32 v100, {sNONCE}, v100")
e(f"v_xor_b32 v102, {sNONCE}, v102")
e("v_or3_b32 v96, v96, v98, v100")
e("v_or_b32 v96, v96, v102")
e("v_cmp_ne_u32 vcc, 0, v96")
e("s_cbranch_vccz L_f1_ok")
spin_guard("L_f1_ok")
poll1_issue()
e("s_waitcnt vmcnt(0)")
e("s_branch L_f1_chk")
g.label("L_f1_ok")
pcount("poll1")
e("v_max3_u32 v97, v97, v99, v101")
e("v_max_u32 v97, v97, v103")
e(f"ds_write_b32 {vBL}, v97 offset:{L_SQ}")
g.join([stA, g.state()])
g.label("L_p1_b5")
stamp("preB5")
g.barrier()
stamp("B5")


NB, AKV = 3, 112


def kv_load(kt, part):
    b = AKV + 16 * (kt % NB) + 8 * part
    e(f"s_add_u32 {sT[15]}, {sKV}, {sKO[part]}")
    ld4(ar(b, 4), vL16, sT[15], 2048 * part)
    ld4(ar(b + 4, 4), vL16, sT[15], 2048 * part + 1024)
    e(f"s_addk_i32 {sKO[part]}, 4096")
    e(f"s_and_b32 {sKO[part]}, {sKO[part]}, 0xffff")


for kt in range(2):
    kv_load(kt, 0)
    kv_load(kt, 1)
for s in range(4):
    e(f"s_add_u32 {sT[2]}, {sW}, {s+1}")
    e(f"s_and_b32 {sT[2]}, {sT[2]}, 3")
    e(f"s_lshl_b32 {sT[2]}, {sT[2]}, 11")
    e(f"v_add_u32 {vT0}, {sT[2]}, {vL16}")
    e(f"ds_read_b128 {ar(AQ+8*s,4)}, {vT0} offset:{L_QX}")
    e(f"ds_read_b128 {ar(AQ+8*s+4,4)}, {vT0} offset:{L_QX+1024}")
e(f"v_and_b32 {vT0}, 31, {vLANE}")
e(f"v_lshlrev_b32 {vT0}, 2, {vT0}")
e(f"v_add_u32 {vT0}, {L_QN}, {vT0}")
for k in range(4):
    e(f"ds_read2_b32 {vr(24+2*k,2)}, {vT0} offset0:{64*k} offset1:{64*k+32}")
e(f"v_lshlrev_b32 {vT1}, 2, {vLANE}")
e(f"ds_read_b32 v32, {vT1} offset:{L_SQ}")
for k in range(4):
    e(f"v_add_f32 v{24+2*k}, v{24+2*k}, v{25+2*k}")
e("v_max3_f32 v24, v24, v26, v28")
e("v_max_f32 v24, v24, v30")
wave_max_u32("v32", sT[3], sT[2])
e(f"v_mul_f32 v24, {sT[2]}, v24")
setup_bases()
pp_store()
e(f"v_cmp_ngt_f32 vcc, {f2u(96.0):#x}, v24")
if FORCE_SLOW:
    e("s_branch L_slow")
else:
    e("s_cbranch_vccnz L_slow")
st_slow = g.state()


def poll2_issue():
    e(f"v_lshlrev_b32 {vT4}, 7, {vLANE}")
    e(f"s_mov_b32 {sT[2]}, {WS_FLAG2}")
    ld4(vr(POLL, 4) if not PROF else "v[240:243]", vT4, sT[2])


def poll2_check(uniq):
    P = POLL if not PROF else 240
    e(f"s_mov_b32 {sSPIN}, 0")
    g.label(f"L_p2c_{uniq}")
    e(f"v_xor_b32 v{P}, {sNONCE}, v{P}")
    e(f"v_xor_b32 v{P+1}, {sNONCE}, v{P+1}")
    e(f"v_xor_b32 v{P+2}, {sNONCE}, v{P+2}")
    e(f"v_xor_b32 v{P+3}, {sNONCE}, v{P+3}")
    e(f"v_or3_b32 v{P}, v{P}, v{P+1}, v{P+2}")
    e(f"v_or_b32 v{P}, v{P}, v{P+3}")
    e(f"v_cmp_ne_u32 vcc, 0, v{P}")
    e(f"s_cbranch_vccz L_p2k_{uniq}")
    st = g.state()
    spin_guard(f"L_p2k_{uniq}")
    e("s_sleep 4")
    poll2_issue()
    e("s_waitcnt vmcnt(0)")
    e(f"s_branch L_p2c_{uniq}")
    g.set_state(st)
    g.label(f"L_p2k_{uniq}")


def poll3_issue():
    e(f"v_and_b32 {vT4}, 7, {vLANE}")
    e(f"v_lshlrev_b32 {vT4}, 2, {vT4}")
    e(f"s_lshl_b32 {sT[2]}, {sG}, 7")
    e(f"s_add_u32 {sT[2]}, {sT[2]}, {WS_FLAG3}")
    e(f"buffer_load_dword {vT5}, {vT4}, {SRD_WS}, {sT[2]} offen sc1")


def poll3_check(uniq):
    e(f"s_mov_b32 {sSPIN}, 0")
    g.label(f"L_p3c_{uniq}")
    e(f"v_cmp_ne_u32 vcc, {sNONCE}, {vT5}")
    e(f"s_cbranch_vccz L_p3k_{uniq}")
    st = g.state()
    spin_guard(f"L_p3k_{uniq}")
    e("s_sleep 4")
    poll3_issue()
    e("s_waitcnt vmcnt(0)")
    e(f"s_branch L_p3c_{uniq}")
    g.set_state(st)
    g.label(f"L_p3k_{uniq}")


def h_store(src4, rt, uniq, tag):
    if rt:
        e(f"s_add_u32 {sT[4]}, {sHFW}, {28*1024}")
    so = sT[4] if rt else sHFW
    e(f"s_cmp_eq_u32 {sW}, 3")
    e(f"s_cbranch_scc1 L_hs3_{uniq}")
    st = g.state()
    st4(vr(src4, 4), vL16, so, tag=tag)
    e(f"s_branch L_hsd_{uniq}")
    st1 = g.state()
    g.set_state(st)
    g.label(f"L_hs3_{uniq}")
    e(f"v_lshlrev_b32 {vT4}, 3, {vLANE}")
    e(f"buffer_store_dwordx2 {vr(src4,2)}, {vT4}, {SRD_WS}, {so} offen sc1", tag=tag)
    g.join([st1, g.state()])
    g.label(f"L_hsd_{uniq}")


def sentinel_ops(uniq):
    ops = []
    for f in range(2):
        ops.append(lambda f=f: st4(vr(SENT, 4), vL16, sOFW, f * 1024, tag="sent"))
    for rt in range(2):
        ops.append(lambda rt=rt: h_store(SENT, rt, f"{uniq}s{rt}", "sent"))
    for rt in range(2):
        for c in range(2):
            def f2(rt=rt, c=c):
                if rt and c == 0:
                    e(f"s_add_u32 {sT[5]}, {sHIDW}, {112*1024}")
                for f in range(2):
                    st4(vr(SENT, 4), vW1B if c else vL16, sT[5] if rt else sHIDW, c * 2048 + f * 1024, tag="sent")
            ops.append(f2)
    return ops


def w1home(c, t):
    if c == 0:
        return 4 * t
    return 192 + 4 * t if t < 8 else (112 + 4 * (t - 8) if t < 20 else AQ + 4 * (t - 20))


def w1_load(c, t, first=False):
    if t % 4 == 0 or first:
        e(f"s_add_u32 {sT[6]}, {sW1B}, {sROT7[t//4]}")
        if c:
            e(f"s_add_u32 {sT[6]}, {sT[6]}, {28*1024}")
    ld4(ar(w1home(c, t), 4), vW1B if c else vL16, sT[6], (t % 4) * 1024)


w2home = {}
fr = [(t, a) for t in range(28) for a in range(2)]
homes1 = [vr(148 + 4 * i, 4) for i in range(8)] + [ar(160 + 4 * i, 4) for i in range(8)]
homes2 = [vr(180 + 4 * i, 4) for i in range(16)] + [vr(140 + 4 * i, 4) for i in range(2)]
homes3 = [ar(w1home(i % 2, i // 2), 4) for i in range(22)]
for k, hm in enumerate(homes1 + homes2 + homes3):
    w2home[fr[k]] = hm
ACC5 = [48, 64, 80, 96]


def w2_load(k, first=False):
    t, a = fr[k]
    if k % 4 == 0 or k == 34 or first:
        e(f"s_lshl1_add_u32 {sT[6]}, {sROT7[t//4]}, {sW2B}")
        if (t // 2) % 2:
            e(f"s_add_u32 {sT[6]}, {sT[6]}, 4096")
    ld4(w2home[(t, a)], vT3 if a else vW2A, sT[6], (t % 2) * 2048)


def wo_load(t, a):
    if a == 0:
        e(f"s_lshl1_add_u32 {sT[7]}, {sROT8[t]}, {sWOB}")
    ld4(vr(WOR + 8 * t + 4 * a, 4), vWOA1 if a else vWOA0, sT[7])


def prefetch_ops():
    def grp(fs):
        return lambda: [f() for f in fs]
    w1g = lambda c, q: [grp([lambda t=t: w1_load(c, t, True) for t in range(4 * q + h, 4 * q + h + 1)] +
                            [lambda t=4 * q + h + 1: w1_load(c, t)]) for h in (0, 2)]
    wog = lambda t: [grp([lambda: wo_load(t, 0), lambda: wo_load(t, 1)])]
    w2g = lambda k: [grp([lambda: w2_load(k, True), lambda: w2_load(k + 1)])]
    first = w1g(0, 0) + w1g(0, 1) + wog(0) + wog(1) + w1g(1, 0) + w1g(1, 1) + sum([w2g(k) for k in range(0, 16, 2)], [])
    rest = sum([w1g(0, q) for q in range(2, 7)], []) + sum([wog(t) for t in range(2, 8)], [])
    return first, rest


def touch_ops():
    def t_w1():
        e(f"v_lshlrev_b32 {vT4}, 3, {vW1B}")
        e(f"v_max_u32 {vT4}, {vW1B}, {vT4}")
        e(f"s_mul_i32 {sT[2]}, s3, 7168")
        e(f"s_add_u32 {sT[2]}, {sT[2]}, {sW1B}")
        e(f"s_add_u32 {sT[2]}, {sT[2]}, {28*1024}")
        e(f"buffer_load_dword v248, {vT4}, {SRD_WS}, {sT[2]} offen sc1")

    def t_w2(k):
        e(f"v_lshlrev_b32 {vT4}, 7, {vLANE}")
        e(f"s_mul_i32 {sT[2]}, s3, 14336")
        e(f"s_add_u32 {sT[2]}, {sT[2]}, {sW2B}")
        if k:
            e(f"s_add_u32 {sT[2]}, {sT[2]}, 6144")
        e(f"buffer_load_dword v{249+k}, {vT4}, {SRD_WS}, {sT[2]} offen sc1")
    return [t_w1, lambda: t_w2(0), lambda: t_w2(1)]


extras = {i: [] for i in range(-1, 70)}
P2_ISSUE, P2_CHECK = 10, 14
extras[3].append(lambda: (g.wait_tag("ppst"), last_wave_signal_begin(8, vT6)))
extras[4].append(lambda: signal_end(vT6, 2, "f2"))
so = sentinel_ops("a")
for k, op in enumerate(so):
    extras[8 + 4 * k].append(op)
extras[P2_ISSUE].append(poll2_issue)
extras[P2_CHECK].append(lambda: poll2_check("a"))
extras[46].append(lambda: (g.wait_tag("sent"), last_wave_signal_begin(12, vT6)))
extras[47].append(lambda: signal_end(vT6, 3, "f3"))
pf_first, pf_rest = prefetch_ops()
F0, F1, R0, R1 = P2_CHECK + 1, 58, 34, 61
for k, op in enumerate(pf_first):
    extras[F0 + k * (F1 - F0) // len(pf_first)].append(op)
for k, op in enumerate(pf_rest):
    extras[R0 + k * (R1 - R0) // len(pf_rest)].append(op)
extras[54].append(poll3_issue)
extras[60].append(lambda: poll3_check("a"))
extras[0].insert(0, lambda: (kv_load(2, 0), kv_load(2, 1)))
for kt in range(16 - NB):
    extras[4 * kt + 3].insert(0, lambda kt=kt: kv_load(kt + NB, 0))
    extras[4 * kt + 5].insert(0, lambda kt=kt: kv_load(kt + NB, 1))


def comb_addr(s):
    e(f"s_add_u32 {sT[2]}, {sW}, {s+1}")
    e(f"s_and_b32 {sT[2]}, {sT[2]}, 3")
    e(f"s_mul_i32 {sT[2]}, {sT[2]}, 12288")
    e(f"s_add_u32 {sT[2]}, {sT[2]}, {L_COMB+s*4096}")
    e(f"v_add_u32 {(vT0, vT1, vT2)[s]}, {sT[2]}, {vL16}")


def comb_write(s, q):
    e(f"ds_write_b128 {(vT0, vT1, vT2)[s]}, {vr(OA+16*s+4*q,4)} offset:{q*1024}")


extras[61].append(lambda: [comb_addr(s) for s in range(3)])


def qk(i, half):
    kt, s = i >> 2, i & 3
    b = AKV + 16 * (kt % NB)
    S = vr(S0 if i % 2 == 0 else S1, 16)
    if half == 0 and s == 0:
        g.wait_regs(ar(b, 8))
    mfma32(S, ar(b + 4 * half, 4), ar(AQ + 8 * s + 4 * half, 4), S if half else "0")


def pv(i, half):
    kt, s = i >> 2, i & 3
    b = AKV + 16 * (kt % NB) + 8
    O = vr(OA + 16 * s, 16)
    if half == 0 and s == 0:
        g.wait_regs(ar(b, 8))
    P = P0 if i % 2 == 0 else P1
    mfma32(O, ar(b + 4 * half, 4), vr(P + 4 * half, 4), "0" if (kt == 0 and half == 0) else O)


g.raw(".p2align 3")
g.hot = True
qk(0, 0)
qk(0, 1)
stamp("attn0")
for i in range(64):
    S = S0 if i % 2 == 0 else S1
    P = P0 if i % 2 == 0 else P1
    for quarter in range(4):
        if quarter < 2:
            if i + 1 < 64:
                qk(i + 1, quarter)
        elif i > 0:
            pv(i - 1, quarter - 2)
        for op in extras[i][quarter::4] if len(extras[i]) <= 4 else (extras[i] if quarter == 0 else []):
            op()
        if quarter == 0 and i in (4, 8, 12, 16, 24, 32, 40, 48, 56):
            stamp(f"a{i}")
        if quarter == 3 and i == P2_CHECK:
            pcount("poll2")
        if (i == 62 and quarter >= 1) or (i == 63 and quarter == 0):
            comb_write(0, (quarter + 3) % 4)
        if i == 63 and quarter >= 1:
            comb_write(1, quarter - 1)
        r0 = 4 * quarter
        for r in range(r0, r0 + 4):
            e(f"v_exp_f32 v{S+r}, v{S+r}")
        if quarter > 0:
            e(f"v_cvt_pk_bf16_f32 v{P+2*quarter-1}, v{S+r0-2}, v{S+r0-1}")
        e(f"v_cvt_pk_bf16_f32 v{P+2*quarter}, v{S+r0}, v{S+r0+1}")
        if quarter == 3:
            e(f"v_cvt_pk_bf16_f32 v{P+7}, v{S+14}, v{S+15}")
pv(63, 0)
comb_write(1, 3)
pv(63, 1)
g.hot = False
e("s_branch L_comb2")
st_fast = g.state()
g.label("L_comb")
for s in range(3):
    comb_addr(s)
for s in range(2):
    for q in range(4):
        comb_write(s, q)
g.label("L_comb2")
stamp("attn1")
for q in range(4):
    comb_write(2, q)
e(f"v_add_u32 {vT0}, {L_COMB}, {vEXC}")
OWN = OA + 48
g.barrier()
for s in range(3):
    for q in range(4):
        e(f"ds_read_b128 {vr(OA+16*s+4*q,4)}, {vT0} offset:{s*4096+q*1024}")
for s in range(3):
    for r in range(0, 16, 2):
        e(f"v_pk_add_f32 {vr(OWN+r,2)}, {vr(OWN+r,2)}, {vr(OA+16*s+r,2)}")
e(f"v_mov_b32 {vT0}, v{OWN+12}")
e(f"v_mov_b32 {vT2}, v{OWN+12}")
e(f"v_permlane32_swap_b32 {vT0}, {vT2}")
e(f"v_rcp_f32 {vT1}, {vT2}")
e("s_nop 0")
for f in range(2):
    for r in range(8 * f, 8 * f + 8, 2):
        e(f"v_pk_mul_f32 {vr(OWN+r,2)}, {vr(OWN+r,2)}, v[8:9] op_sel_hi:[1,0]")
    for r in range(4 * f, 4 * f + 4):
        e(f"v_cvt_pk_bf16_f32 v{S0+r}, v{OWN+2*r}, v{OWN+2*r+1}")
    if f:
        e(f"v_cndmask_b32 v{S0+6}, v{S0+6}, {vZERO}, {sMASKH}")
        e(f"v_cndmask_b32 v{S0+7}, v{S0+7}, {vZERO}, {sMASKH}")
    st4(vr(S0 + 4 * f, 4), vL16, sOFW, 1024 * f)
stamp("ostore")
for t in range(8, 22):
    w1_load(1, t)
OFR = [20 + 4 * i for i in range(12)] + [132 + 4 * i for i in range(4)]
ACC3 = OA
e(f"s_mov_b32 {sSPIN}, 0")
g.label("L_p3_try")
e(f"v_add_u32 {vT0}, 0x8000, {vL16}")
for t in range(8):
    e(f"s_add_u32 {sT[2]}, {sOFR}, {sROT8[t]}")
    for rt in range(2):
        ld4(vr(OFR[2 * t + rt], 4), vT0 if rt else vL16, sT[2])
e(f"v_mov_b32 {vCHK}, 0")
for t in range(8):
    for rt in range(2):
        B = OFR[2 * t + rt]
        for a in range(2):
            acc = vr(ACC3 + 32 * rt + 16 * a, 16)
            mfma32(acc, vr(WOR + 8 * t + 4 * a, 4), vr(B, 4), acc if t else "0")
            e(f"v_max3_u32 {vCHK}, {vCHK}, v{B+2*a}, v{B+2*a+1}")
e(f"v_cmp_eq_u32 vcc, -1, {vCHK}")
e("s_cbranch_vccz L_p3_ok")
spin_guard("L_p3_ok")
e("s_sleep 2")
e("s_branch L_p3_try")
g.label("L_p3_ok")
stamp("p3gemm")
pcount("p3")


def exch_write(delta, regs_fn, base, kind="v"):
    e(f"s_xor_b32 {sT[2]}, {sW}, {delta}")
    e(f"s_mul_i32 {sT[2]}, {sT[2]}, 12288")
    e(f"v_add_u32 {vT0}, {sT[2]}, {vL16}")


for d in range(1, 4):
    exch_write(d, None, None)
    for rt in range(2):
        for q in range(2):
            e(f"ds_write_b128 {vT0}, {vr(ACC3+32*rt+16*(d&1)+8*(d>>1)+4*q,4)} offset:{L_RED3+(d-1)*4096+rt*2048+q*1024}")
e(f"v_lshlrev_b32 {vT1}, 2, {vLANE}")
e(f"s_lshl_b32 {sT[2]}, {sW}, 9")
e(f"v_add_u32 {vT0}, {sT[2]}, {vT1}")
st = g.state()
ends = []
for w in range(4):
    if w < 3:
        e(f"s_cmp_lg_u32 {sW}, {w}")
        e(f"s_cbranch_scc1 L_mu_{w+1}")
    reg = 16 * (1 ^ (w & 1)) + (4 if w >> 1 else 12)
    for rt in range(2):
        e(f"ds_write_b32 {vT0}, v{ACC3+32*rt+reg} offset:{L_MX+rt*256}")
    if w < 3:
        e("s_branch L_mu_done")
        ends.append(g.state())
        g.set_state(st)
        g.label(f"L_mu_{w+1}")
g.join(ends + [g.state()])
g.label("L_mu_done")
g.barrier()
RB = 20
for d in range(3):
    for rt in range(2):
        for q in range(2):
            e(f"ds_read_b128 {vr(RB+16*d+8*rt+4*q,4)}, {vEXC} offset:{L_RED3+d*4096+rt*2048+q*1024}")
e(f"v_and_b32 {vT1}, 31, {vLANE}")
e(f"v_lshlrev_b32 {vT0}, 2, {vT1}")
e(f"v_lshlrev_b32 {vT1}, 3, {vT1}")
e(f"v_add_u32 {vT0}, {L_MX}, {vT0}")
e(f"v_add_u32 {vT1}, {L_STATS}, {vT1}")
MU = 132
for rt in range(2):
    e(f"ds_read2st64_b32 {vr(MU+4*rt,2)}, {vT0} offset0:{rt} offset1:{rt+2}")
    e(f"ds_read2st64_b32 {vr(MU+4*rt+2,2)}, {vT0} offset0:{rt+4} offset1:{rt+6}")
    e(f"ds_read_b32 v{MU+8+rt}, {vT1} offset:{rt*256}")
for rt in range(2):
    A = ACC3 + 32 * rt
    for d in range(3):
        for r in range(0, 8, 2):
            e(f"v_pk_add_f32 {vr(A+r,2)}, {vr(A+r,2)}, {vr(RB+16*d+8*rt+r,2)}")
    e(f"v_add_f32 v{MU+4*rt}, v{MU+4*rt}, v{MU+4*rt+1}")
    e(f"v_add_f32 v{MU+4*rt+2}, v{MU+4*rt+2}, v{MU+4*rt+3}")
    e(f"v_add_f32 v{MU+4*rt}, v{MU+4*rt}, v{MU+4*rt+2}")
    e(f"v_add_f32 v{MU+4*rt}, v{MU+4*rt}, v{MU+8+rt}")
    for i in range(4):
        x = XRES + 4 * rt + i
        e(f"v_lshlrev_b32 v{A+8}, 16, v{x}")
        e(f"v_and_b32 v{A+9}, 0xffff0000, v{x}")
        e(f"v_add_f32 v{A+2*i}, v{A+2*i}, v{A+8}")
        e(f"v_add_f32 v{A+2*i+1}, v{A+2*i+1}, v{A+9}")
        e(f"v_cvt_pk_bf16_f32 v{x}, v{A+2*i}, v{A+2*i+1}")
    for i in range(4):
        x = XRES + 4 * rt + i
        e(f"v_lshlrev_b32 v{A+8}, 16, v{x}")
        e(f"v_and_b32 v{A+9}, 0xffff0000, v{x}")
        e(f"v_sub_f32 v{A+8}, v{A+8}, v{MU+4*rt}")
        e(f"v_sub_f32 v{A+9}, v{A+9}, v{MU+4*rt}")
        e(f"v_cvt_pk_bf16_f32 v{A+12+i}, v{A+8}, v{A+9}")
    h_store(A + 12, rt, f"h{rt}", None)
stamp("hstore")
for t in range(22, 28):
    w1_load(1, t, first=(t == 22))
for k in range(16, 24):
    w2_load(k)
HS = 20
e(f"s_mul_i32 {sT[2]}, {sW}, {14*1024}")
e(f"s_and_b32 {sT[3]}, {sW}, 1")
e(f"s_lshr_b32 {sT[4]}, {sW}, 1")
e(f"s_mul_i32 {sT[3]}, {sT[3]}, {28*1024}")
e(f"s_mul_i32 {sT[4]}, {sT[4]}, {14*1024}")
e(f"s_add_u32 {sT[3]}, {sT[3]}, {sT[4]}")
e(f"s_add_u32 {sT[3]}, {sT[3]}, {L_HSH}")
e(f"v_add_u32 {vT1}, {sT[3]}, {vL16}")
e(f"v_lshlrev_b32 {vT4}, 3, {vLANE}")
e(f"s_mov_b32 {sSPIN}, 0")
g.label("L_p4_try")
for t in range(14):
    if t % 4 == 0:
        e(f"s_add_u32 {sT[2]}, {sHFR}, {t*1024}")
    if t in (3, 10):
        for hh in range(2):
            e(f"buffer_load_dwordx2 {vr(HS+4*t+2*hh,2)}, {vT4}, {SRD_WS}, {sT[2]} offen offset:{(t%4)*1024+hh*512} sc1")
    else:
        ld4(vr(HS + 4 * t, 4), vL16, sT[2], (t % 4) * 1024)
e(f"v_mov_b32 {vCHK}, 0")
for t in range(14):
    B = HS + 4 * t
    e(f"ds_write_b128 {vT1}, {vr(B,4)} offset:{t*1024}")
    e(f"v_max3_u32 {vCHK}, {vCHK}, v{B}, v{B+1}")
    e(f"v_max3_u32 {vCHK}, {vCHK}, v{B+2}, v{B+3}")
    for i in range(4):
        a = "v76" if i % 2 == 0 else "v77"
        e(f"v_dot2_f32_bf16 {a}, v{B+i}, v{B+i}, {a if (t or i >= 2) else '0'}")
e(f"v_cmp_eq_u32 vcc, -1, {vCHK}")
e("s_cbranch_vccz L_p4_ok")
spin_guard("L_p4_ok")
e("s_sleep 2")
e("s_branch L_p4_try")
g.label("L_p4_ok")
e("v_add_f32 v76, v76, v77")
e(f"v_lshlrev_b32 {vT0}, 2, {vLANE}")
e(f"s_lshl_b32 {sT[2]}, {sW}, 8")
e(f"v_add_u32 {vT0}, {sT[2]}, {vT0}")
e(f"ds_write_b32 {vT0}, v76 offset:{L_SQ}")
stamp("hload")
pcount("p4")
g.barrier()
stamp("B7")
ACC1 = [20, 108]
BR, B1R, GT = 52, 68, 84
vRS = ["v104", "v105"]
vC0 = "v106"
vB1A = "v107"
e(f"v_and_b32 {vT0}, 31, {vLANE}")
e(f"v_lshlrev_b32 {vT0}, 2, {vT0}")
e(f"v_add_u32 {vT0}, {L_SQ}, {vT0}")
for rt in range(2):
    e(f"ds_read2_b32 {vr(GT+4*rt,2)}, {vT0} offset0:{rt*64} offset1:{rt*64+32}")
    e(f"ds_read2_b32 {vr(GT+4*rt+2,2)}, {vT0} offset0:{rt*64+128} offset1:{rt*64+160}")


def b_read(rt, t):
    if t % 4 == 0:
        e(f"v_add_u32 {vT2}, {sROT7[t//4]}, {vT1}")
    e(f"ds_read_b128 {vr(BR+4*(t%4),4)}, {vT2} offset:{(rt*28+t%4)*1024}")


e(f"v_add_u32 {vT1}, {L_HSH}, {vL16}")
for t in range(3):
    b_read(0, t)
C0 = -2.0 * (2 / 3.141592653589793) ** 0.5 * 1.4426950408889634
C1 = C0 * 0.044715
e(f"v_mov_b32 {vC0}, {f2u(C0):#x}")
e(f"v_lshrrev_b32 {vB1A}, 5, {vLANE}")
e(f"v_lshlrev_b32 {vB1A}, 4, {vB1A}")
e(f"s_lshl_b32 {sT[2]}, {sW}, 8")
e(f"v_add_u32 {vB1A}, {sT[2]}, {vB1A}")
for rt in range(2):
    T = GT + 4 * rt
    e(f"v_add_f32 v{T}, v{T}, v{T+1}")
    e(f"v_add_f32 v{T+2}, v{T+2}, v{T+3}")
    e(f"v_add_f32 v{T}, v{T}, v{T+2}")
    e(f"v_mul_f32 v{T}, {f2u(1/448):#x}, v{T}")
    e(f"v_add_f32 v{T}, {f2u(1e-5):#x}, v{T}")
    e(f"v_rsq_f32 {vRS[rt]}, v{T}")


def gelu_ops(rt):
    ops = []
    for c in range(2):
        A = ACC1[rt] + 16 * c
        for q in range(4):
            ops.append(lambda c=c, q=q: e(f"ds_read_b128 {vr(B1R+4*q,4)}, {vB1A} offset:{L_B1+c*128+q*32}"))
        for grp in range(4):
            rs = [A + 4 * grp + i for i in range(4)]
            ts = [GT + 4 * (grp % 2) + i for i in range(4)]
            seq = [
                lambda r, t_, c=c, A=A: e(f"v_fma_f32 v{r}, v{r}, {vRS[rt]}, v{B1R+r-A}"),
                lambda r, t_: e(f"v_mul_f32 v{t_}, v{r}, v{r}"),
                lambda r, t_: e(f"v_fmamk_f32 v{t_}, v{t_}, {f2u(C1):#x}, {vC0}"),
                lambda r, t_: e(f"v_mul_f32 v{t_}, v{t_}, v{r}"),
                lambda r, t_: e(f"v_exp_f32 v{t_}, v{t_}"),
                lambda r, t_: e(f"v_add_f32 v{t_}, 1.0, v{t_}"),
                lambda r, t_: e(f"v_rcp_f32 v{t_}, v{t_}"),
                lambda r, t_: e(f"v_mul_f32 v{r}, v{r}, v{t_}"),
            ]
            for fn in seq:
                for r, t_ in zip(rs, ts):
                    ops.append(lambda fn=fn, r=r, t_=t_: fn(r, t_))
            PK = GT + 8 + 4 * ((grp >> 1) + 2 * c) % 12
            PK = GT + 8 + 4 * (((grp >> 1) + 2 * c) % 3)
            for i in range(2):
                ops.append(lambda PK=PK, grp=grp, i=i, rs=rs: e(f"v_cvt_pk_bf16_f32 v{PK+2*(grp&1)+i}, v{rs[2*i]}, v{rs[2*i+1]}"))
            if grp & 1:
                def stf(PK=PK, c=c, f=grp >> 1):
                    if rt and c == 0 and f == 0:
                        e(f"s_add_u32 {sT[5]}, {sHIDW}, {112*1024}")
                    st4(vr(PK, 4), vW1B if c else vL16, sT[5] if rt else sHIDW, c * 2048 + f * 1024)
                ops.append(stf)
    return ops


g.hot = True
for t in range(28):
    if t + 3 < 28:
        b_read(0, t + 3)
    else:
        b_read(1, t + 3 - 28)
    for c in range(2):
        acc = vr(ACC1[0] + 16 * c, 16)
        mfma32(acc, ar(w1home(c, t), 4), vr(BR + 4 * (t % 4), 4), acc if t else "0")
        if 2 * t + c < 10:
            w2_load(24 + 2 * t + c)
stamp("ffn1a")
gops = gelu_ops(0)
gi = 0
w2k = 34
for t in range(28):
    if t + 3 < 28:
        b_read(1, t + 3)
    for c in range(2):
        acc = vr(ACC1[1] + 16 * c, 16)
        mfma32(acc, ar(w1home(c, t), 4), vr(BR + 4 * (t % 4), 4), acc if t else "0")
        m = 2 * t + c
        want = 0 if m < 2 else (m - 1) * len(gops) // 54
        while gi < min(want, len(gops)):
            gops[gi]()
            gi += 1
    if 1 <= t <= 11:
        w2_load(w2k)
        w2_load(w2k + 1)
        w2k += 2
while gi < len(gops):
    gops[gi]()
    gi += 1
assert w2k == 56
stamp("ffn1b")
HR = 20


def hid_load(rt, t):
    if t % 4 == 0:
        e(f"s_add_u32 {sT[7+rt]}, {sHIDR}, {sROT7[t//4]}")
        if rt:
            e(f"s_add_u32 {sT[7+rt]}, {sT[7+rt]}, {112*1024}")
    ld4(vr(HR + 4 * t, 4), vL16, sT[7 + rt], (t % 4) * 1024)


gops = gelu_ops(1)
EARLY = 12
for k, op in enumerate(gops):
    op()
    if k == len(gops) * 3 // 4:
        for t in range(EARLY):
            hid_load(0, t)
g.hot = False
stamp("gelu1")
LAG = 12
e(f"s_mov_b32 {sSPIN}, 0")
g.label("L_p5a_body")
for t in range(EARLY, 28):
    hid_load(0, t)
vCH2 = vT5
e(f"v_mov_b32 {vCHK}, 0")
for t in range(28):
    B = HR + 4 * t
    for a in range(2):
        acc = ar(ACC5[a], 16)
        mfma32(acc, w2home[(t, a)], vr(B, 4), acc if t else "0")
        e(f"v_max3_u32 {vCHK}, {vCHK}, v{B+2*a}, v{B+2*a+1}")
    if t >= LAG:
        hid_load(1, t - LAG)
e(f"v_cmp_eq_u32 vcc, -1, {vCHK}")
e("s_cbranch_vccz L_p5a_ok")
st = g.state()
spin_guard("L_p5a_ok")
e("s_waitcnt vmcnt(0)")
e("s_sleep 2")
for t in range(EARLY):
    hid_load(0, t)
e("s_waitcnt vmcnt(0)")
e("s_branch L_p5a_body")
g.set_state(st)
g.label("L_p5a_ok")
stamp("ffn2a")
pcount("p5a")
for t in range(28 - LAG, 28):
    hid_load(1, t)
for d in range(1, 4):
    exch_write(d, None, None)
    for q in range(2):
        e(f"ds_write_b128 {vT0}, {ar(ACC5[d&1]+8*(d>>1)+4*q,4)} offset:{L_RED5+(d-1)*4096+q*1024}")
e(f"s_mov_b32 {sSPIN}, 0")
g.label("L_p5b_body")
e(f"v_mov_b32 {vCHK}, 0")
for t in range(28):
    B = HR + 4 * t
    for a in range(2):
        acc = ar(ACC5[2 + a], 16)
        mfma32(acc, w2home[(t, a)], vr(B, 4), acc if t else "0")
        e(f"v_max3_u32 {vCHK}, {vCHK}, v{B+2*a}, v{B+2*a+1}")
e(f"v_cmp_eq_u32 vcc, -1, {vCHK}")
e("s_cbranch_vccz L_p5b_ok")
st = g.state()
spin_guard("L_p5b_ok")
e("s_sleep 2")
for t in range(28):
    hid_load(1, t)
e("s_waitcnt vmcnt(0)")
e("s_branch L_p5b_body")
g.set_state(st)
g.label("L_p5b_ok")
stamp("ffn2b")
pcount("p5b")
for d in range(1, 4):
    exch_write(d, None, None)
    for q in range(2):
        e(f"ds_write_b128 {vT0}, {ar(ACC5[2+(d&1)]+8*(d>>1)+4*q,4)} offset:{L_RED5+(d-1)*4096+2048+q*1024}")
FA = 68
for rt in range(2):
    for r in range(8):
        e(f"v_accvgpr_read_b32 v{FA+8*rt+r}, a{ACC5[2*rt]+r}")
e(f"s_mul_i32 {sT[2]}, {sJ}, 112")
e(f"s_sub_u32 {sT[2]}, {sC}, {sT[2]}")
e(f"s_lshl_b32 {sT[2]}, {sT[2]}, 1")
e(f"v_lshrrev_b32 {vT1}, 5, {vLANE}")
e(f"v_lshl_add_u32 {vT0}, {vT1}, 4, {sT[2]}")
e(f"ds_read_b128 v[84:87], {vT0} offset:{L_B2}")
e(f"ds_read_b128 v[88:91], {vT0} offset:{L_B2+32}")
e(f"v_and_b32 {vT0}, 31, {vLANE}")
e(f"v_mul_u32_u24 {vT0}, 896, {vT0}")
e(f"v_lshl_add_u32 {vT0}, {vT1}, 4, {vT0}")
e(f"s_cmp_eq_u32 {sW}, 3")
e(f"s_cselect_b32 {sT[4]}, {OOB:#x}, 0")
e(f"v_mov_b32 {vT2}, {sT[4]}")
e(f"v_cndmask_b32 {vT2}, {vZERO}, {vT2}, {sMASKH}")
e(f"v_add_u32 {vT2}, {vT2}, {vT0}")
e(f"s_mul_i32 {sT[3]}, {sG}, {64*896}")
e(f"s_add_u32 {sT[3]}, {sT[3]}, {sC}")
e(f"s_add_u32 {sT[4]}, {sT[3]}, {32*896}")
g.barrier()
for rt in range(2):
    for d in range(3):
        for q in range(2):
            e(f"ds_read_b128 {vr(RB+16*d+8*rt+4*q,4)}, {vEXC} offset:{L_RED5+d*4096+rt*2048+q*1024}")
for rt in range(2):
    A = FA + 8 * rt
    for r in range(8):
        e(f"v_add_f32 v{A+r}, v{A+r}, v{84+r}")
    for i in range(4):
        x = XRES + 4 * rt + i
        e(f"v_lshlrev_b32 v92, 16, v{x}")
        e(f"v_and_b32 v93, 0xffff0000, v{x}")
        e(f"v_add_f32 v{A+2*i}, v{A+2*i}, v92")
        e(f"v_add_f32 v{A+2*i+1}, v{A+2*i+1}, v93")
for rt in range(2):
    A = FA + 8 * rt
    for d in range(3):
        for r in range(0, 8, 2):
            e(f"v_pk_add_f32 {vr(A+r,2)}, {vr(A+r,2)}, {vr(RB+16*d+8*rt+r,2)}")
    OQ = 96 + 4 * rt
    for i in range(4):
        e(f"v_cvt_pk_bf16_f32 v{OQ+i}, v{A+2*i}, v{A+2*i+1}")
    e(f"v_permlane32_swap_b32 v{OQ}, v{OQ+2}")
    e(f"v_permlane32_swap_b32 v{OQ+1}, v{OQ+3}")
    e(f"buffer_store_dwordx4 {vr(OQ,4)}, {vT2}, {SRD_OUT}, {sT[3+rt]} offen")
stamp("end")
if PROF:
    e("s_memrealtime s[42:43]")
    e("s_waitcnt lgkmcnt(0)")
    e("v_writelane_b32 v251, s42, 61")
if PROF:
    e(f"s_lshl_b32 {sT[2]}, s2, 2")
    e(f"s_add_u32 {sT[2]}, {sT[2]}, {sW}")
    e(f"s_lshl_b32 {sT[2]}, {sT[2]}, 8")
    e(f"s_add_u32 {sT[2]}, {sT[2]}, {WS_PROF}")
    e(f"v_lshlrev_b32 {vT0}, 2, {vLANE}")
    e(f"buffer_store_dword v251, {vT0}, {SRD_WS}, {sT[2]} offen")
    if "--dbg" in sys.argv:
        want = ["B1", "kvstore", "B3", "qgemm", "B5", "attn0", "a16", "a32", "attn1", "p3gemm", "hstore", "B7", "ffn1b", "ffn2a", "end"]
        e(f"s_cmp_lg_u32 s2, {int(sys.argv[sys.argv.index('--dbg')+1])}")
        e("s_cbranch_scc1 L_end")
        e(f"s_cmp_lg_u32 {sW}, 0")
        e("s_cbranch_scc1 L_end")
        e("v_readlane_b32 s16, v251, 0")
        for k, nme in enumerate(want):
            e(f"v_readlane_b32 s17, v251, {PROF_NAMES.index(nme)}")
            e("s_sub_u32 s17, s17, s16")
            e(f"v_writelane_b32 v250, s17, {k+1}")
        e("s_mov_b64 exec, 0xfffe")
        e(f"buffer_store_dword v250, {vT0}, {SRD_DBG}, 0 offen")
g.label("L_end")
e("s_endpgm")

g.set_state(st_slow)
g.label("L_slow")
e("s_waitcnt vmcnt(0) lgkmcnt(0)")
last_wave_signal_begin(8, vT6)
signal_end(vT6, 2, "f2s")
for op in sentinel_ops("b"):
    op()
e("s_waitcnt vmcnt(0)")
last_wave_signal_begin(12, vT6)
signal_end(vT6, 3, "f3s")
poll2_issue()
poll2_check("b")
for op in sum(prefetch_ops(), []):
    op()
poll3_issue()
poll3_check("b")
MM = 60
for s in range(4):
    e(f"v_mov_b32 v{MM+s}, 0xff7fffff")
    for r in range(16):
        e(f"v_mov_b32 v{OA+16*s+r}, 0")
e(f"s_mov_b32 {sT[8]}, 0")
g.label("L_slow_loop")
for i in range(4):
    ld4(vr(KVB + 4 * i, 4), vL16, sKV, i * 1024)
e("s_waitcnt vmcnt(0)")
for s in range(4):
    S = vr(S0, 16)
    mfma32(S, vr(KVB, 4), ar(AQ + 8 * s, 4), "0")
    mfma32(S, vr(KVB + 4, 4), ar(AQ + 8 * s + 4, 4), S)
    e(f"v_max3_f32 v64, v{S0}, v{S0+1}, v{MM+s}")
    for r in range(2, 16, 2):
        e(f"v_max3_f32 v64, v{S0+r}, v{S0+r+1}, v64")
    e("v_mov_b32 v65, v64")
    e("v_permlane32_swap_b32 v64, v65")
    e("v_max_f32 v64, v64, v65")
    e(f"v_sub_f32 v65, v{MM+s}, v64")
    e("v_exp_f32 v65, v65")
    e(f"v_mov_b32 v{MM+s}, v64")
    for r in range(16):
        e(f"v_sub_f32 v{S0+r}, v{S0+r}, v64")
        e(f"v_exp_f32 v{S0+r}, v{S0+r}")
        e(f"v_mul_f32 v{OA+16*s+r}, v65, v{OA+16*s+r}")
    for r in range(8):
        e(f"v_cvt_pk_bf16_f32 v{P0+r}, v{S0+2*r}, v{S0+2*r+1}")
    O = vr(OA + 16 * s, 16)
    mfma32(O, vr(KVB + 8, 4), vr(P0, 4), O)
    mfma32(O, vr(KVB + 12, 4), vr(P0 + 4, 4), O)
e(f"s_add_u32 {sKV}, {sKV}, 4096")
e(f"s_add_u32 {sT[8]}, {sT[8]}, 1")
e(f"s_cmp_lt_u32 {sT[8]}, 16")
e("s_cbranch_scc1 L_slow_loop")
e(f"v_lshlrev_b32 {vT1}, 2, {vLANE}")
for s in range(4):
    e(f"s_add_u32 {sT[2]}, {sW}, {s+1}")
    e(f"s_and_b32 {sT[2]}, {sT[2]}, 3")
    e(f"s_lshl_b32 {sT[2]}, {sT[2]}, 10")
    e(f"v_add_u32 v{64+s}, {sT[2]}, {vT1}")
    e(f"s_lshl_b32 {sT[3]}, {sW}, 8")
    e(f"v_add_u32 {vT0}, {sT[3]}, v{64+s}")
    e(f"ds_write_b32 {vT0}, v{MM+s} offset:{L_MX}")
g.barrier()
for s in range(4):
    for k in range(4):
        e(f"ds_read_b32 v{S0+k}, v{64+s} offset:{L_MX+k*256}")
    e(f"v_max3_f32 v{S0}, v{S0}, v{S0+1}, v{S0+2}")
    e(f"v_max_f32 v{S0}, v{S0}, v{S0+3}")
    e(f"v_sub_f32 v{S0}, v{MM+s}, v{S0}")
    e(f"v_exp_f32 v{S0}, v{S0}")
    for r in range(16):
        e(f"v_mul_f32 v{OA+16*s+r}, v{S0}, v{OA+16*s+r}")
g.barrier()
e("s_waitcnt vmcnt(0) lgkmcnt(0)")
e("s_branch L_comb")
g.label("L_code_end")

body = g.finish()
n, nbytes, nops = g.stats()
body = body.replace("0x11111,", "L_code_end-L_pcref-4,")

HEADER = open("cdna_kernels/" + KNAME[:-7] + ".s.ref").read().split("; Override launch")[0]
src = HEADER + f"""; One persistent launch, 256 workgroups (one per CU), hand-offs between workgroups through d_ws.
; @launch grid=(256,1,1) block=(256,1,1) lds={LDS_BYTES}
.amdgcn_target "amdgcn-amd-amdhsa--gfx950"
.text
.globl {KNAME}
.p2align 8
.type {KNAME},@function
{body}
.section .rodata,"a"
.p2align 6
.amdhsa_kernel {KNAME}
  .amdhsa_next_free_vgpr 512
  .amdhsa_next_free_sgpr 102
  .amdhsa_accum_offset 256
  .amdhsa_group_segment_fixed_size 0
  .amdhsa_kernarg_size 104
  .amdhsa_user_sgpr_count 2
  .amdhsa_user_sgpr_kernarg_segment_ptr 1
  .amdhsa_system_sgpr_workgroup_id_x 1
  .amdhsa_float_denorm_mode_32 3
.end_amdhsa_kernel
"""
out = [a for a in sys.argv[1:] if a.endswith(".s")]
out = out[0] if out else "k.s"
open(out, "w").write(src)
if PROF:
    open(out + ".names", "w").write("\n".join(PROF_NAMES))
print(f"{out}: {n} instructions, {nbytes} bytes, {nops} s_nop")
```

```python
import sys, struct
from asmgen import Gen

KNAME = "sequential_preLN__grouped_kv_mqa__dense_activation_gelu__prompt_kernel"
PROF = "--prof" in sys.argv
TOUCH = "--notouch" not in sys.argv
LATE_PP = "--latepp" in sys.argv
NOSENT = "--nosent" in sys.argv
FORCE_SLOW = "--slow" in sys.argv


def opt(name, default):
    return sys.argv[sys.argv.index(name) + 1] if name in sys.argv else default


def f2u(x):
    return struct.unpack("<I", struct.pack("<f", x))[0]


WS_FLAG1, WS_FLAG4, WS_FLAG3 = 0x0, 0x2000, 0x4000
WS_KV = 0x10000
WS_OF = 0x80000
WS_HF = 0x280000
WS_HID = 0x480000
WS_PROF = 0x1000000
WS_BYTES = 0x10000000
OOB = 0x7F000000
XB = 7296
L_MISC = 0
L_STATS = 256
L_B1 = 768
L_B2 = 1792
L_SQ = 2048
L_MX = 4096
L_QN = 7168
L_QX = 8192
L_X = 16384
L_WQ = L_X + 58368
L_WKV = L_WQ + 57344
L_CSX = L_MX
L_END = L_WKV + 25600
AREA, A_EXC, A_WO, A_STG = 36864, 0, 12288, 26624
LDS_BYTES = 160 * 1024
SPIN_MAX = 1 << 17

sW, sJ, sG, sNONCE = "s4", "s5", "s6", "s7"
SRD_X, SRD_WS, SRD_WQ, SRD_WKV, SRD_W2, SRD_OUT, SRD_DBG, SRD_B = (f"s[{i}:{i+3}]" for i in (8, 12, 44, 48, 52, 56, 60, 64))
sT = [f"s{i}" for i in range(68, 84)]
sKV, sOFW, sOFR, sHFW, sHFR, sHIDW, sHIDR, sWOB, sW1B, sW2B = (f"s{i}" for i in range(84, 94))
sSPIN, sQ16, sKIND, sC = "s94", "s95", "s96", "s97"
sMASKH = "s[98:99]"
SRD_WO, SRD_W1 = SRD_WQ, SRD_WKV
sLB = "s100"
sRET = "s101"
sROT7 = [f"s{i}" for i in range(16, 23)]
sRO = [f"s{i}" for i in range(23, 27)]
sRL = [f"s{i}" for i in range(27, 31)]
sTCH = "s31"
sFLG1 = "s40"
sKO = ["s41", "s101"]

g = Gen()
e = g.e


def vr(a, n=1):
    return f"v{a}" if n == 1 else f"v[{a}:{a+n-1}]"


def ar(a, n=1):
    return f"a{a}" if n == 1 else f"a[{a}:{a+n-1}]"


def srd(name, lo, nbytes):
    b = int(name[2:name.index(":")])
    e(f"s_mov_b32 s{b}, s{lo}")
    e(f"s_and_b32 s{b+1}, s{lo+1}, 0xffff")
    e(f"s_mov_b32 s{b+2}, {nbytes:#x}")
    e(f"s_mov_b32 s{b+3}, 0x20000")


vLANE, vL16 = "v0", "v1"
vZERO = "v2"
vD896, vD3584, vTR1, vD896b = "v3", "v4", "v5", "v6"
vT0, vT1, vT2 = "v7", "v8", "v9"
XRES = 10
vTR2, vTR2b = "v18", "v19"
S0, S1, P0, P1, OA, KVB, SENT = 20, 36, 52, 60, 68, 132, 244
vHL16, vT6, vTR1b, vD3584b = "v248", "v249", "v250", "v251"
vCHK, vT4, vT5 = "v252", "v253", "v254"
vTCH, vDUM = "v186", "v187"
AQ = 224

prof_n = [0]


def stamp(name):
    if not PROF:
        return
    k = prof_n[0]
    prof_n[0] += 1
    PROF_NAMES.append(name)
    e("s_memtime s[42:43]")
    e("s_waitcnt lgkmcnt(0)")
    e(f"v_writelane_b32 v255, s42, {k}")


PROF_NAMES = []


def fstamp(k):
    if PROF:
        e("s_memtime s[42:43]")
        e("s_waitcnt lgkmcnt(0)")
        e(f"v_writelane_b32 v255, s42, {k}")


def pcount(name):
    if not PROF:
        return
    k = prof_n[0]
    prof_n[0] += 1
    PROF_NAMES.append("#" + name)
    e(f"v_writelane_b32 v255, {sSPIN}, {k}")


def mfma32(d, a, b, c):
    e(f"v_mfma_f32_32x32x16_bf16 {d}, {a}, {b}, {c}")


def mfma16(d, a, b, c):
    e(f"v_mfma_f32_16x16x32_bf16 {d}, {a}, {b}, {c}")


def dma(voff, srdn, soff, imm=0, tag=None):
    e(f"buffer_load_dwordx4 {voff}, {srdn}, {soff} offen{f' offset:{imm}' if imm else ''} lds", tag=tag)


def ld4(dst, voff, soff, imm=0, sc1=True, tag=None, srdn=SRD_WS):
    e(f"buffer_load_dwordx4 {dst}, {voff}, {srdn}, {soff} offen{f' offset:{imm}' if imm else ''}{' sc1' if sc1 else ''}", tag=tag)


def st4(src, voff, soff, imm=0, tag=None):
    e(f"buffer_store_dwordx4 {src}, {voff}, {SRD_WS}, {soff} offen{f' offset:{imm}' if imm else ''} sc1", tag=tag)


def wave_max_u32(v, tmp, sdst, rows=4):
    for r in (1, 2, 4, 8):
        e(f"v_max_u32_dpp {v}, {v}, {v} row_ror:{r} row_mask:0xf bank_mask:0xf")
    e(f"v_readlane_b32 {sdst}, {v}, 0")
    for k in range(1, rows):
        e(f"v_readlane_b32 {tmp}, {v}, {16*k}")
        e(f"s_max_u32 {sdst}, {sdst}, {tmp}")


def row_stats_multi(jobs):
    for (xa, X, sa) in jobs:
        for i in range(7):
            e(f"ds_read_b128 {vr(X+4*i,4)}, {xa} offset:{i*1024}")
    for (xa, X, sa) in jobs:
        a0, a1, q0, q1 = (vr(X + 28 + i) for i in range(4))
        for i in range(28):
            a, q = (a0, q0) if i % 2 == 0 else (a1, q1)
            c1, c2 = (a, q) if i >= 2 else ("0", "0")
            e(f"v_dot2_f32_bf16 {a}, {vr(X+i)}, v140, {c1}")
            e(f"v_dot2_f32_bf16 {q}, {vr(X+i)}, {vr(X+i)}, {c2}")
    for (xa, X, sa) in jobs:
        e(f"v_add_f32 v{X+28}, v{X+28}, v{X+29}")
        e(f"v_add_f32 v{X+30}, v{X+30}, v{X+31}")
    for m in ("quad_perm:[1,0,3,2]", "quad_perm:[2,3,0,1]", "row_half_mirror"):
        for (xa, X, sa) in jobs:
            e(f"v_add_f32_dpp v{X+28}, v{X+28}, v{X+28} {m} row_mask:0xf bank_mask:0xf")
            e(f"v_add_f32_dpp v{X+30}, v{X+30}, v{X+30} {m} row_mask:0xf bank_mask:0xf")
    for fn in (lambda X: f"v_mul_f32 v{X+34}, {f2u(1/448):#x}, v{X+28}",
               lambda X: f"v_mul_f32 v{X+30}, {f2u(1/448):#x}, v{X+30}",
               lambda X: f"v_fma_f32 v{X+30}, -v{X+34}, v{X+34}, v{X+30}",
               lambda X: f"v_max_f32 v{X+30}, 0, v{X+30}",
               lambda X: f"v_add_f32 v{X+30}, {f2u(1e-5):#x}, v{X+30}",
               lambda X: f"v_rsq_f32 v{X+35}, v{X+30}"):
        for (xa, X, sa) in jobs:
            e(fn(X))
    e("s_nop 0")
    for (xa, X, sa) in jobs:
        e(f"ds_write_b64 {sa}, {vr(X+34,2)}")


def last_wave_signal_begin(cnt_off, vtmp):
    e(f"v_mov_b32 {vtmp}, 1")
    e("s_mov_b64 exec, 1")
    e(f"ds_add_rtn_u32 {vtmp}, {vZERO}, {vtmp} offset:{L_MISC+cnt_off}")
    e("s_mov_b64 exec, -1")


def spin_guard(lbl_out):
    e(f"s_add_u32 {sSPIN}, {sSPIN}, 1")
    e(f"s_cmp_gt_u32 {sSPIN}, {SPIN_MAX}")
    e(f"s_cbranch_scc1 {lbl_out}")


g.raw(f"{KNAME}:")
e("s_cmp_ge_u32 s2, 256")
e("s_cbranch_scc1 L_end")
e("s_load_dwordx16 s[16:31], s[0:1], 0")
e("s_load_dwordx8 s[32:39], s[0:1], 64")
e("s_load_dwordx2 s[40:41], s[0:1], 96")
e("s_getpc_b64 s[64:65]")
g.label("L_pcref")
e(f"v_lshrrev_b32 {vT0}, 6, v0")
e("v_and_b32 v0, 63, v0")
e(f"s_lshr_b32 s3, s2, 3")
e(f"v_lshl_add_u32 {vT1}, s3, 2, {vT0}")
e(f"v_min_u32 {vT2}, 2, {vLANE}")
e(f"v_mad_u32_u24 {vT1}, {vT1}, 3, {vT2}")
e(f"v_lshlrev_b32 {vT1}, 7, {vT1}")
e(f"v_min_u32 {vT1}, 0x11111, {vT1}")
e(f"global_load_dword v232, {vT1}, s[64:65]")
if PROF:
    e("v_mov_b32 v255, 0")
    e("s_memtime s[42:43]")
e(f"v_readfirstlane_b32 {sW}, {vT0}")
e(f"v_lshlrev_b32 {vL16}, 4, {vLANE}")
e(f"v_mov_b32 {vZERO}, 0")
e(f"s_and_b32 {sJ}, s3, 7")
e(f"s_lshr_b32 s3, s3, 3")
e(f"s_and_b32 {sG}, s2, 7")
e(f"s_lshl2_add_u32 {sG}, {sG}, s3")
e(f"s_lshr_b32 {sQ16}, {sJ}, 1")
e(f"s_and_b32 {sKIND}, {sJ}, 1")
vXO, vUNU, vXE, vXD, vWT, vST, vKVO, vNP = (f"v{i}" for i in range(20, 28))
vXA = [f"v{152+u}" for u in range(4)]
vWA, vWB, vXR0, vXR1, vCSW, vCSR, vQST, vQXW, vF1, vBL, vQNW = (f"v{i}" for i in range(156, 167))
vSX = [f"v{168+i}" for i in range(3)]
vSS = [f"v{171+i}" for i in range(3)]
e(f"v_lshrrev_b32 {vT0}, 3, {vLANE}")
e(f"v_and_b32 {vT1}, 7, {vLANE}")
e(f"v_xor_b32 {vT2}, {vT1}, {vT0}")
e(f"v_mul_u32_u24 {vT0}, 896, {vT0}")
e(f"v_lshl_add_u32 {vXO}, {vT2}, 4, {vT0}")
PROF_NAMES.append("start")
prof_n[0] = 1


def build_srds():
    e("s_waitcnt lgkmcnt(0)")
    if PROF:
        e("v_writelane_b32 v255, s42, 0")
    fstamp(55)
    srd(SRD_X, 16, 2048 * 896)
    if "--wstop" in sys.argv:
        e(f"s_add_u32 s40, s40, {WS_BYTES - 0x2000000:#x}")
        e("s_addc_u32 s41, s41, 0")
        srd(SRD_WS, 40, 0x2000000)
    else:
        srd(SRD_WS, 40, WS_BYTES)


def x_block_dma(sblk, tag=None):
    e(f"s_mul_i32 m0, {sblk}, {XB}")
    e(f"s_add_u32 m0, m0, {L_X}")
    e(f"s_lshl3_add_u32 {sT[2]}, {sG}, {sblk}")
    e(f"s_mul_i32 {sT[2]}, {sT[2]}, {8*896}")
    for i in range(7):
        dma(vXO, SRD_X, sT[2], 128 * i, tag=tag)
        if i < 6:
            e(f"s_addk_i32 m0, 896")


def x_block_ops(sblk_set, tag):
    def first():
        sblk_set()
        e(f"s_mul_i32 m0, {sBLK}, {XB}")
        e(f"s_add_u32 m0, m0, {L_X}")
        e(f"s_lshl3_add_u32 {sT[5]}, {sG}, {sBLK}")
        e(f"s_mul_i32 {sT[5]}, {sT[5]}, {8*896}")
        dma(vXO, SRD_X, sT[5], 0, tag=tag)

    def nxt(i):
        e(f"s_addk_i32 m0, 896")
        e("s_nop 0")
        dma(vXO, SRD_X, sT[5], 128 * i, tag=tag)
    return [first] + [lambda i=i: nxt(i) for i in range(1, 7)]


def stats_addr(k, sblk):
    e(f"s_mul_i32 {sT[2]}, {sblk}, {XB}")
    e(f"s_add_u32 {sT[2]}, {sT[2]}, {L_X}")
    e(f"v_add_u32 {vSX[k]}, {sT[2]}, {vL16}")
    e(f"s_lshl_b32 {sT[2]}, {sblk}, 6")
    e(f"s_add_u32 {sT[2]}, {sT[2]}, {L_STATS}")
    e(f"v_and_b32 {vSS[k]}, 0x38, {vLANE}")
    e(f"v_add_u32 {vSS[k]}, {sT[2]}, {vSS[k]}")


sRT, sHD = sT[0], sT[1]
sCT, sQH = sHD, sRT


def setup_kv():
    e(f"v_and_b32 {vT0}, 15, {vLANE}")
    e(f"v_lshrrev_b32 {vT1}, 4, {vLANE}")
    e(f"v_and_b32 {vT2}, 7, {vLANE}")
    e(f"v_xor_b32 {vXE}, {vT1}, {vT2}")
    e(f"v_lshlrev_b32 {vXE}, 4, {vXE}")
    e(f"v_lshl_add_u32 {vXE}, {vT2}, 7, {vXE}")
    e(f"v_lshrrev_b32 {vT2}, 3, {vT0}")
    e(f"s_lshl_b32 {sT[3]}, {sQ16}, 1")
    e(f"v_add_u32 {vT2}, {sT[3]}, {vT2}")
    e(f"v_mul_u32_u24 {vT2}, {XB}, {vT2}")
    e(f"v_add_u32 {vXE}, {vXE}, {vT2}")
    e(f"v_add_u32 {vXE}, {L_X}, {vXE}")
    e(f"v_xor_b32 {vXD}, 64, {vXE}")
    e(f"v_lshrrev_b32 {vT2}, 2, {vT0}")
    e(f"v_lshl_add_u32 {vT2}, {vT1}, 3, {vT2}")
    e(f"v_mul_u32_u24 {vT2}, 56, {vT2}")
    e(f"v_and_b32 {vWT}, 3, {vLANE}")
    e(f"v_lshl_add_u32 {vT2}, {vWT}, 3, {vT2}")
    e(f"s_lshl_b32 {sT[3]}, {sW}, 5")
    e(f"s_add_u32 {sT[3]}, {sT[3]}, {L_WKV}")
    e(f"v_add_u32 {vWT}, {sT[3]}, {vT2}")
    e(f"v_lshlrev_b32 {vT2}, 3, {vT0}")
    e(f"v_lshlrev_b32 {vST}, 5, {vT1}")
    e(f"s_cmp_eq_u32 {sKIND}, 0")
    e(f"s_cselect_b64 vcc, -1, 0")
    e(f"v_cndmask_b32 {vST}, {vST}, {vT2}, vcc")
    e(f"s_lshl_b32 {sT[3]}, {sQ16}, 7")
    e(f"s_add_u32 {sT[3]}, {sT[3]}, {L_STATS}")
    e(f"v_add_u32 {vST}, {sT[3]}, {vST}")
    e(f"v_bfe_u32 {vT2}, {vLANE}, 4, 1")
    e(f"v_lshl_add_u32 {vT0}, {vT2}, 5, {vT0}")
    e(f"v_lshlrev_b32 {vT0}, 4, {vT0}")
    e(f"v_lshrrev_b32 {vT1}, 5, {vLANE}")
    e(f"v_lshl_add_u32 {vKVO}, {vT1}, 3, {vT0}")
    e(f"s_and_b32 {sT[3]}, {sQ16}, 1")
    e(f"s_cmp_eq_u32 {sKIND}, 0")
    e(f"s_cselect_b32 {sT[4]}, {sW}, {sT[3]}")
    e(f"s_cselect_b32 {sT[5]}, {sT[3]}, {sW}")
    e(f"s_lshl_b32 {sT[4]}, {sT[4]}, 10")
    e(f"s_lshl_b32 {sT[5]}, {sT[5]}, 8")
    e(f"s_add_u32 {sT[4]}, {sT[4]}, {sT[5]}")
    e(f"s_lshl_b32 {sT[5]}, {sKIND}, 11")
    e(f"s_add_u32 {sT[4]}, {sT[4]}, {sT[5]}")
    e(f"s_lshl_b32 {sT[3]}, {sG}, 1")
    e(f"s_lshr_b32 {sT[5]}, {sQ16}, 1")
    e(f"s_add_u32 {sT[3]}, {sT[3]}, {sT[5]}")
    e(f"s_lshl_b32 {sT[3]}, {sT[3]}, 12")
    e(f"s_add_u32 {sT[4]}, {sT[4]}, {sT[3]}")
    e(f"s_add_u32 {sRET}, {sT[4]}, {WS_KV}")


def setup_q():
    e(f"v_and_b32 {vT0}, 7, {vLANE}")
    e(f"v_lshrrev_b32 {vT1}, 5, {vLANE}")
    e(f"v_xor_b32 {vT2}, {vT0}, {vT1}")
    e(f"s_lshl_b32 {sT[2]}, {sRT}, 2")
    e(f"v_xor_b32 {vT2}, {sT[2]}, {vT2}")
    e(f"v_lshlrev_b32 {vT2}, 4, {vT2}")
    e(f"v_lshl_add_u32 {vT2}, {vT0}, 7, {vT2}")
    e(f"v_bfe_u32 {vT0}, {vLANE}, 3, 2")
    e(f"v_add_u32 {vT0}, {sT[2]}, {vT0}")
    e(f"v_mul_u32_u24 {vT0}, {XB}, {vT0}")
    e(f"v_add_u32 {vXA[0]}, {vT0}, {vT2}")
    for u in range(1, 4):
        e(f"v_xor_b32 {vXA[u]}, {32*u}, {vXA[0]}")
    e(f"v_bfe_u32 {vT0}, {vLANE}, 2, 2")
    e(f"v_lshl_add_u32 {vT1}, {vT1}, 3, {vT0}")
    e(f"v_lshlrev_b32 {vT1}, 7, {vT1}")
    e(f"v_lshrrev_b32 {vT0}, 1, {vT0}")
    e(f"v_lshlrev_b32 {vT0}, 6, {vT0}")
    e(f"v_and_b32 {vT2}, 3, {vLANE}")
    e(f"v_lshl_add_u32 {vT0}, {vT2}, 3, {vT0}")
    e(f"v_bfe_u32 {vT2}, {vLANE}, 4, 1")
    e(f"v_lshl_add_u32 {vT0}, {vT2}, 5, {vT0}")
    e(f"s_mul_i32 {sT[2]}, {sHD}, 56")
    e(f"v_add_u32 {vT0}, {sT[2]}, {vT0}")
    e(f"v_and_b32 {vT0}, 127, {vT0}")
    e(f"v_add_u32 {vT0}, {vT0}, {vT1}")
    e(f"s_lshl_b32 {sT[2]}, {sRT}, 12")
    e(f"s_add_u32 {sT[3]}, {sT[2]}, {L_WQ}")
    e(f"v_add_u32 {vWA}, {sT[3]}, {vT0}")
    e(f"s_sub_u32 {sT[3]}, {L_WQ+4096}, {sT[2]}")
    e(f"v_add_u32 {vWB}, {sT[3]}, {vT0}")
    e(f"s_lshl_b32 {sT[2]}, {sJ}, 7")
    e(f"s_lshl_b32 {sT[3]}, {sCT}, 6")
    e(f"s_add_u32 {sT[2]}, {sT[2]}, {sT[3]}")
    e(f"s_lshl_b32 {sT[3]}, {sQH}, 5")
    e(f"s_add_u32 {sC}, {sT[2]}, {sT[3]}")
    e(f"v_lshrrev_b32 {vT1}, 5, {vLANE}")
    e(f"v_lshlrev_b32 {vT1}, 3, {vT1}")
    e(f"v_and_b32 {vT0}, 7, {vLANE}")
    e(f"v_lshl_add_u32 {vT1}, {vT0}, 7, {vT1}")
    e(f"v_bfe_u32 {vT2}, {vLANE}, 3, 2")
    e(f"v_mul_u32_u24 {vT2}, {XB}, {vT2}")
    e(f"v_add_u32 {vT1}, {vT1}, {vT2}")
    for pc, dst in enumerate((vXR0, vXR1)):
        e(f"s_lshr_b32 {sT[2]}, {sC}, 4")
        if pc:
            e(f"s_add_u32 {sT[2]}, {sT[2]}, 1")
        e(f"s_and_b32 {sT[3]}, {sT[2]}, 7")
        e(f"s_lshr_b32 {sT[2]}, {sT[2]}, 3")
        e(f"s_lshl_b32 {sT[2]}, {sT[2]}, 10")
        e(f"v_xor_b32 {vT2}, {sT[3]}, {vT0}")
        e(f"v_lshl_add_u32 {vT2}, {vT2}, 4, {vT1}")
        e(f"v_add_u32 {dst}, {sT[2]}, {vT2}")
    e(f"s_lshl_b32 {sT[2]}, {sW}, 7")
    e(f"v_and_b32 {vT0}, 32, {vLANE}")
    e(f"v_lshl_add_u32 {vCSW}, {vT0}, 1, {sT[2]}")
    e(f"v_xor_b32 {vCSR}, 0x100, {vCSW}")
    e(f"v_and_b32 {vT0}, 31, {vLANE}")
    e(f"s_lshl_b32 {sT[2]}, {sRT}, 8")
    e(f"s_add_u32 {sT[2]}, {sT[2]}, {L_STATS}")
    e(f"v_lshl_add_u32 {vQST}, {vT0}, 3, {sT[2]}")
    e(f"s_lshl_b32 {sT[2]}, {sW}, 11")
    e(f"v_add_u32 {vQXW}, {sT[2]}, {vL16}")
    e(f"v_lshlrev_b32 {vF1}, 7, {vLANE}")
    e(f"v_lshlrev_b32 {vBL}, 2, {vLANE}")
    e(f"s_lshl_b32 {sT[2]}, {sW}, 8")
    e(f"v_add_u32 {vQNW}, {sT[2]}, {vBL}")
    for i in range(4):
        e(f"v_mov_b32 v{140+i}, 0x3f803f80")
    e("s_mov_b32 s98, 0")
    e("s_mov_b32 s99, -1")
    e(f"s_lshl_b32 {sKV}, {sW}, 16")
    e(f"s_add_u32 {sKV}, {sKV}, {WS_KV}")
    e(f"s_lshl_b32 {sKO[0]}, s2, 9")
    e(f"s_and_b32 {sKO[0]}, {sKO[0]}, 0xf000")


def setup_bases():
    e(f"s_lshl_b32 {sT[2]}, {sG}, 16")
    e(f"s_add_u32 {sT[3]}, {sT[2]}, {WS_OF}")
    e(f"s_lshl_b32 {sOFW}, {sRT}, 4")
    e(f"s_lshl1_add_u32 {sT[4]}, {sJ}, {sHD}")
    e(f"s_add_u32 {sOFW}, {sOFW}, {sT[4]}")
    e(f"s_lshl_b32 {sOFW}, {sOFW}, 11")
    e(f"s_add_u32 {sOFW}, {sOFW}, {sT[3]}")
    e(f"s_lshl_b32 {sOFR}, {sW}, 13")
    e(f"s_add_u32 {sOFR}, {sOFR}, {sT[3]}")
    e(f"s_add_u32 {sT[3]}, {sT[2]}, {WS_HF}")
    e(f"s_lshl1_add_u32 {sT[4]}, {sCT}, {sQH}")
    e(f"s_lshl2_add_u32 {sT[4]}, {sJ}, {sT[4]}")
    e(f"s_lshl_b32 {sT[4]}, {sT[4]}, 10")
    e(f"s_add_u32 {sHFW}, {sT[4]}, {sT[3]}")
    e(f"s_lshl1_add_u32 {sT[4]}, {sCT}, {sQH}")
    e(f"s_mul_i32 {sT[4]}, {sT[4]}, {14*1024}")
    e(f"s_add_u32 {sHFR}, {sT[4]}, {sT[3]}")
    e(f"s_mul_i32 {sT[3]}, {sG}, {224*1024}")
    e(f"s_add_u32 {sT[3]}, {sT[3]}, {WS_HID}")
    e(f"s_lshl2_add_u32 {sT[4]}, {sJ}, {sW}")
    e(f"s_lshl_b32 {sT[4]}, {sT[4]}, 12")
    e(f"s_add_u32 {sHIDW}, {sT[4]}, {sT[3]}")
    e(f"s_mul_i32 {sHIDR}, {sW}, {28*1024}")
    e(f"s_add_u32 {sHIDR}, {sHIDR}, {sT[3]}")
    e(f"s_lshl_b32 {sT[3]}, {sJ}, 7")
    e(f"s_mul_i32 {sWOB}, {sW}, {112*896}")
    e(f"s_add_u32 {sWOB}, {sWOB}, {sT[3]}")
    e(f"s_mul_i32 {sW2B}, {sW}, {448*896}")
    e(f"s_add_u32 {sW2B}, {sW2B}, {sT[3]}")
    e(f"s_lshl2_add_u32 {sW1B}, {sJ}, {sW}")
    e(f"s_lshl_b32 {sW1B}, {sW1B}, 7")
    e(f"s_mul_i32 {sLB}, {sW}, {AREA}")
    e(f"s_add_u32 {sLB}, {sLB}, {L_X}")
    srd(SRD_WO, 24, 448 * 896)
    srd(SRD_W1, 28, 448 * 3584)
    srd(SRD_W2, 32, 1792 * 896)
    srd(SRD_OUT, 36, 2048 * 896)
    e(f"s_cmp_eq_u32 {sJ}, 7")
    e(f"s_cselect_b32 {sT[4]}, {OOB:#x}, 0")
    e(f"v_add_u32 {vHL16}, {sT[4]}, {vL16}")
    e(f"v_lshrrev_b32 {vT0}, 3, {vLANE}")
    e(f"v_bfe_u32 {vT1}, {vLANE}, 4, 1")
    e(f"v_lshl_add_u32 {vT1}, {vT1}, 2, {vLANE}")
    e(f"v_and_b32 {vT1}, 7, {vT1}")
    e(f"v_lshl_add_u32 {vT1}, {vT1}, 4, {sT[4]}")
    e(f"v_mul_u32_u24 {vT0}, 896, {vT0}")
    e(f"v_add_u32 {vD896}, {vT0}, {vT1}")
    e(f"v_lshl_add_u32 {vD3584}, {vT0}, 2, {vT1}")
    e(f"v_add_u32 {vD896b}, {8*896-1024}, {vD896}")
    e(f"v_add_u32 {vD3584b}, {8*3584-1024}, {vD3584}")
    e(f"v_bfe_u32 {vT0}, {vLANE}, 2, 2")
    e(f"v_lshrrev_b32 {vT1}, 5, {vLANE}")
    e(f"v_lshl_add_u32 {vT1}, {vT1}, 2, {vT0}")
    e(f"v_lshl_add_u32 {vT1}, {vT1}, 7, {sLB}")
    e(f"v_lshrrev_b32 {vT0}, 1, {vT0}")
    e(f"v_lshl_add_u32 {vT1}, {vT0}, 6, {vT1}")
    e(f"v_and_b32 {vT0}, 3, {vLANE}")
    e(f"v_lshl_add_u32 {vT1}, {vT0}, 3, {vT1}")
    e(f"v_bfe_u32 {vT0}, {vLANE}, 4, 1")
    e(f"v_lshl_add_u32 {vTR1}, {vT0}, 5, {vT1}")
    e(f"v_xor_b32 {vTR1b}, 64, {vTR1}")
    e(f"s_lshl1_add_u32 {sT[4]}, {sCT}, {sQH}")
    e(f"s_lshl_b32 {sT[4]}, {sT[4]}, 5")
    e(f"v_xor_b32 {vTR2}, {sT[4]}, {vTR1}")
    e(f"v_xor_b32 {vTR2b}, 64, {vTR2}")
    e(f"v_min_u32 {vTCH}, 24, {vLANE}")
    e(f"v_lshlrev_b32 {vTCH}, 7, {vTCH}")
    for i in range(4):
        e(f"v_mov_b32 v{SENT+i}, -1")
    e(f"s_lshr_b32 {sTCH}, s2, 3")
    e(f"s_lshl2_add_u32 {sTCH}, {sTCH}, {sW}")
    e(f"s_mov_b32 {sT[2]}, {sJ}")
    for i in range(7):
        e(f"s_cmp_eq_u32 {sT[2]}, 7")
        e(f"s_cselect_b32 {sT[2]}, 0, {sT[2]}")
        e(f"s_lshl_b32 {sROT7[i]}, {sT[2]}, 12")
        e(f"s_add_u32 {sT[2]}, {sT[2]}, 1")
    for i in range(4):
        e(f"s_add_u32 {sT[2]}, {sJ}, {i}")
        e(f"s_and_b32 {sT[2]}, {sT[2]}, 3")
        e(f"s_lshl_b32 {sRO[i]}, {sT[2]}, 11")
        e(f"s_mul_i32 {sRL[i]}, {sT[2]}, {28*128}")


e(f"s_lshr_b32 {sRT}, {sW}, 1")
e(f"s_and_b32 {sHD}, {sW}, 1")
sBLK = sT[15]
e(f"s_lshl1_add_u32 {sBLK}, {sQ16}, {sHD}")
build_srds()
e(f"s_cmp_lt_u32 {sW}, 2")
e("s_cbranch_scc1 L_p1_A")
st0 = g.state()
x_block_dma(sBLK, tag="crit")
e("s_branch L_p1_B")
stB0 = g.state()
g.set_state(st0)
g.label("L_p1_A")
srd(SRD_DBG, 38, 256)
e(f"s_or_b32 {sT[2]}, s2, {sW}")
e(f"s_cmp_lg_u32 {sT[2]}, 0")
e("s_cbranch_scc1 L_p1_nst")
stA = g.state()
e("s_memrealtime s[66:67]")
e("s_waitcnt lgkmcnt(0)")
e("s_or_b32 s66, s66, 1")
e(f"v_mov_b32 {vNP}, s66")
e("s_mov_b64 exec, 1")
e(f"buffer_store_dword {vNP}, {vZERO}, {SRD_DBG}, 0 offen sc1")
e("s_mov_b64 exec, -1")
g.join([stA, g.state()])
g.label("L_p1_nst")
e(f"s_cmp_eq_u32 {sKIND}, 0")
e("s_cselect_b32 s48, s20, s22")
e("s_cselect_b32 s49, s21, s23")
e("s_and_b32 s49, s49, 0xffff")
e(f"s_movk_i32 s50, {448*56}")
e("s_mov_b32 s51, 0x20000")
e(f"s_lshr_b32 {sT[4]}, s2, 4")
e(f"s_mul_i32 {sT[3]}, {sT[4]}, 86")
e(f"s_lshr_b32 {sT[3]}, {sT[3]}, 8")
e(f"s_mul_i32 {sT[3]}, {sT[3]}, 3")
e(f"s_sub_u32 {sT[4]}, {sT[4]}, {sT[3]}")
e(f"s_lshl_b32 {sT[4]}, {sT[4]}, 12")
e(f"s_mul_i32 {sT[5]}, {sW}, 12288")
for grp in range(3):
    e(f"s_add_u32 {sT[2]}, {sT[4]}, {sT[5]}")
    e(f"s_add_u32 m0, {sT[2]}, {L_WKV}")
    if grp < 2:
        e(f"s_addk_i32 {sT[4]}, 4096")
        e(f"s_cmpk_eq_u32 {sT[4]}, 12288")
        e(f"s_cselect_b32 {sT[4]}, 0, {sT[4]}")
    else:
        e("s_nop 0")
    for i in range(4):
        dma(vL16, SRD_WKV, sT[2], i * 1024)
    if grp == 0:
        fstamp(56)
e(f"s_add_u32 {sT[2]}, {sT[5]}, 12288")
e(f"s_add_u32 m0, {sT[2]}, {L_WKV}")
e("s_nop 0")
dma(vL16, SRD_WKV, sT[2], tag="crit")
srd(SRD_WQ, 18, 448 * 896)
e(f"s_lshr_b32 {sT[3]}, s2, 3")
e(f"s_lshl1_add_u32 {sT[3]}, {sT[3]}, {sW}")
e(f"s_mul_i32 {sT[3]}, {sT[3]}, {49*128}")
e(f"v_min_u32 {vT0}, 48, {vLANE}")
e(f"v_lshlrev_b32 {vT0}, 7, {vT0}")
e(f"buffer_load_dword v233, {vT0}, {SRD_WQ}, {sT[3]} offen")
fstamp(50)
setup_kv()
e(f"s_lshl1_add_u32 {sBLK}, {sW}, {sBLK}")
for m in range(3):
    e(f"s_add_u32 {sT[3]}, {sBLK}, {2+m}")
    e(f"s_and_b32 {sT[3]}, {sT[3]}, 7")
    stats_addr(m, sT[3])
e(f"s_add_u32 {sBLK}, {sBLK}, 1")
e(f"s_mov_b32 s67, {sRET}")
setup_q()
e(f"s_and_b32 {sFLG1}, s2, 63")
e(f"s_lshl_b32 {sFLG1}, {sFLG1}, 7")
e(f"s_lshr_b32 {sT[2]}, s2, 6")
e(f"s_lshl3_add_u32 {sFLG1}, {sT[2]}, {sFLG1}")
for i in range(4):
    e(f"v_mov_b32 v{28+i}, 0")
e(f"ds_write_b128 {vZERO}, v[28:31] offset:{L_MISC}")
e(f"ds_write_b128 {vZERO}, v[28:31] offset:{L_MISC+16}")
e(f"s_mov_b32 {sSPIN}, 0")
e(f"buffer_load_dword {vNP}, {vZERO}, {SRD_DBG}, 0 offen sc1")
fstamp(51)
g.wait_tag("crit")
fstamp(52)
g.barrier()
stamp("B1")
XF, WF = 28, 84
ACC16, CS16, ONES = vr(144, 4), vr(148, 4), vr(140, 4)


def kv_reads(t):
    e(f"ds_read_b128 {vr(XF+4*t,4)}, {vXE if t%2==0 else vXD} offset:{(t>>1)*1024}")
    for h in range(2):
        e(f"ds_read_b64_tr_b16 {vr(WF+4*t+2*h,2)}, {vWT} offset:{t*1792+h*224}")


def blk_next():
    e(f"s_add_u32 {sBLK}, {sBLK}, 1")
    e(f"s_and_b32 {sBLK}, {sBLK}, 7")


def xrest_ops():
    return sum([x_block_ops(blk_next, "xrest") for m in range(3)], [])


for t in range(5):
    kv_reads(t)
e(f"s_cmp_lg_u32 {sKIND}, 0")
e("s_cbranch_scc1 L_p1_vk")
stK = g.state()
xo = xrest_ops()
for t in range(14):
    if t + 5 < 14:
        kv_reads(t + 5)
    mfma16(ACC16, vr(WF + 4 * t, 4), vr(XF + 4 * t, 4), ACC16 if t else "0")
    mfma16(CS16, vr(WF + 4 * t, 4), ONES, CS16 if t else "0")
    for op in xo[(3 * t + 1) // 2:(3 * t + 4) // 2]:
        op()
e(f"s_lshl_b32 {sT[3]}, {sW}, 16")
e(f"s_mul_i32 {sT[3]}, {sT[3]}, 0xffff")
e(f"s_mov_b32 vcc_lo, 0")
e(f"s_mov_b32 vcc_hi, {sT[3]}")
g.barrier()
e(f"ds_read_b64 v[28:29], {vST}")
for r in range(4):
    e(f"v_fma_f32 v{144+r}, -v28, v{148+r}, v{144+r}")
for r in range(4):
    e(f"v_mul_f32 v{144+r}, v29, v{144+r}")
for r in range(4):
    e(f"v_cndmask_b32 v{144+r}, v{144+r}, {vZERO}, vcc")
e("v_cvt_pk_bf16_f32 v148, v144, v145")
e("v_cvt_pk_bf16_f32 v149, v146, v147")
e(f"buffer_store_dwordx2 v[148:149], {vKVO}, {SRD_WS}, s67 offen sc1", tag="kvst")
e("v_max3_f32 v150, abs(v144), abs(v145), abs(v146)")
e("v_max_f32 v150, v150, abs(v147)")
e("s_branch L_p1_kvst")
stK2 = g.state()
g.set_state(stK)
g.label("L_p1_vk")
xo = xrest_ops()
for t in range(14):
    if t + 5 < 14:
        kv_reads(t + 5)
    mfma16(ACC16, vr(XF + 4 * t, 4), vr(WF + 4 * t, 4), ACC16 if t else "0")
    mfma16(CS16, ONES, vr(WF + 4 * t, 4), CS16 if t else "0")
    for op in xo[(3 * t + 1) // 2:(3 * t + 4) // 2]:
        op()
e(f"v_and_b32 {vT0}, 15, {vLANE}")
e(f"s_lshl_b32 {sT[3]}, {sW}, 4")
e(f"v_add_u32 {vT0}, {sT[3]}, {vT0}")
e(f"v_cmp_lt_u32 vcc, 27, {vT0}")
e(f"v_cmp_eq_u32 s[72:73], 28, {vT0}")
g.barrier()
e(f"ds_read_b128 v[32:35], {vST}")
e(f"ds_read_b128 v[36:39], {vST} offset:16")
for r in range(4):
    e(f"v_fma_f32 v{144+r}, -v{32+2*r}, v{148+r}, v{144+r}")
for r in range(4):
    e(f"v_mul_f32 v{144+r}, v{33+2*r}, v{144+r}")
e("v_cvt_pk_bf16_f32 v148, v144, v145")
e("v_cvt_pk_bf16_f32 v149, v146, v147")
e(f"v_cndmask_b32 v148, v148, {vZERO}, vcc")
e(f"v_cndmask_b32 v149, v149, {vZERO}, vcc")
e(f"v_cndmask_b32 v148, v148, v140, s[72:73]")
e(f"v_cndmask_b32 v149, v149, v140, s[72:73]")
e(f"buffer_store_dwordx2 v[148:149], {vKVO}, {SRD_WS}, s67 offen sc1", tag="kvst")
e("v_mov_b32 v150, 0")
g.join([stK2, g.state()])
g.label("L_p1_kvst")
stamp("kvstore")
wave_max_u32("v150", sT[5], sT[4])
e(f"v_mov_b32 v150, {sT[4]}")
e(f"ds_max_u32 {vZERO}, v150 offset:{L_MISC+16}")
g.label("L_p1_nchk")
e(f"v_readfirstlane_b32 {sNONCE}, {vNP}")
e(f"s_cmp_lg_u32 {sNONCE}, 0")
e("s_cbranch_scc1 L_p1_ngot")
stA = g.state()
spin_guard("L_p1_ngot")
e(f"buffer_load_dword {vNP}, {vZERO}, {SRD_DBG}, 0 offen sc1")
e("s_waitcnt vmcnt(0)")
e("s_branch L_p1_nchk")
g.set_state(stA)
g.label("L_p1_ngot")
if PROF:
    e(f"v_writelane_b32 v255, {sSPIN}, 62")
e(f"ds_write_b32 {vZERO}, {vNP} offset:{L_MISC}")
g.wait_tag("xrest")
row_stats_multi([(vSX[0], 28, vSS[0])])
fstamp(53)
g.wait_tag("kvst")
fstamp(54)
last_wave_signal_begin(4, "v150")
e(f"ds_read_b32 v149, {vZERO} offset:{L_MISC+16}")
e(f"v_mov_b32 v148, {sNONCE}")
e(f"v_readfirstlane_b32 {sT[2]}, v150")
e(f"s_cmp_lg_u32 {sT[2]}, 1")
e("s_cbranch_scc1 L_p1_nofl")
stB = g.state()
e("s_mov_b64 exec, 1")
e(f"buffer_store_dwordx2 v[148:149], {vZERO}, {SRD_WS}, {sFLG1} offen sc1")
e("s_mov_b64 exec, -1")
g.join([stB, g.state()])
g.label("L_p1_nofl")
row_stats_multi([(vSX[1], 28, vSS[1]), (vSX[2], 64, vSS[2])])
e("s_branch L_p1_b3")
stW01 = g.state()

g.set_state(stB0)
g.label("L_p1_B")
fstamp(50)
stats_addr(0, sBLK)
srd(SRD_WQ, 18, 448 * 896)
srd(SRD_B, 30, 1792 * 2)
srd(SRD_DBG, 34, 448 * 2)
e(f"s_lshl_b32 {sT[2]}, {sJ}, 9")
e(f"s_lshl_b32 {sT[3]}, {sHD}, 8")
e(f"s_add_u32 {sT[2]}, {sT[2]}, {sT[3]}")
e(f"v_lshlrev_b32 {vT0}, 1, {vLANE}")
e(f"v_add_u32 {vT1}, {sT[2]}, {vT0}")
e(f"buffer_load_ushort v240, {vT1}, {SRD_B}, 0 offen")
e(f"buffer_load_ushort v241, {vT1}, {SRD_B}, 0 offen offset:128")
e(f"s_lshl_b32 {sT[2]}, {sJ}, 7")
e(f"v_add_u32 {vT1}, {sT[2]}, {vT0}")
e(f"buffer_load_ushort v242, {vT1}, {SRD_DBG}, 0 offen")
e(f"v_lshrrev_b32 {vT0}, 3, {vLANE}")
e(f"v_bfe_u32 {vT1}, {vLANE}, 4, 1")
e(f"v_lshl_add_u32 {vT1}, {vT1}, 2, {vLANE}")
e(f"v_and_b32 {vT1}, 7, {vT1}")
e(f"v_mul_u32_u24 {vT0}, 896, {vT0}")
e(f"v_lshl_add_u32 {vD896}, {vT1}, 4, {vT0}")
setup_q()
fstamp(51)
g.wait_tag("crit")
fstamp(52)
g.barrier()
prof_n[0] = 1
del PROF_NAMES[1:]
stamp("B1")
row_stats_multi([(vSX[0], 28, vSS[0])])
g.barrier()
stamp("kvstore")
e(f"s_mul_i32 {sT[4]}, {sJ}, 112")
e(f"s_mul_i32 {sT[3]}, {sHD}, {28*8*896}")
e(f"s_add_u32 {sT[4]}, {sT[4]}, {sT[3]}")
e(f"s_mul_i32 {sT[5]}, {sHD}, {28*1024}")
e(f"s_add_u32 {sT[5]}, {sT[5]}, {L_WQ}")
e(f"s_mov_b32 m0, {sT[5]}")
e("s_nop 0")
for b in range(28):
    dma(vD896, SRD_WQ, sT[4], tag="wq")
    if b < 27:
        e(f"s_addk_i32 m0, 1024")
        e(f"s_addk_i32 {sT[4]}, {8*896}")
fstamp(53)
e(f"s_lshl_b32 {sT[2]}, {sHD}, 9")
e(f"v_add_u32 {vT1}, {sT[2]}, {vBL}")
for i in range(3):
    e(f"v_lshlrev_b32 v{240+i}, 16, v{240+i}")
e(f"ds_write_b32 {vT1}, v240 offset:{L_B1}")
e(f"ds_write_b32 {vT1}, v241 offset:{L_B1+256}")
e(f"ds_write_b32 {vBL}, v242 offset:{L_B2}")
g.wait_tag("wq")
fstamp(54)
g.join([stW01, g.state()])
g.label("L_p1_b3")
stamp("preB3")
g.barrier()
stamp("B3")
if PROF:
    e("s_memrealtime s[42:43]")
    e("s_waitcnt lgkmcnt(0)")
    e("v_writelane_b32 v255, s42, 60")
    stamp("B3rt")
QACC, QCS, QX_, QW_ = 104, 120, 32, 64


def signal_end(vtmp, which, uniq):
    e(f"v_readfirstlane_b32 {sT[2]}, {vtmp}")
    e(f"s_cmp_lg_u32 {sT[2]}, 3")
    e(f"s_cbranch_scc1 L_sig_{uniq}")
    st = g.state()
    e(f"s_lshl_b32 {sT[2]}, {sG}, 7")
    e(f"s_lshl2_add_u32 {sT[2]}, {sJ}, {sT[2]}")
    e(f"s_add_u32 {sT[2]}, {sT[2]}, {WS_FLAG3}")
    e(f"v_mov_b32 {vtmp}, {sNONCE}")
    e("s_mov_b64 exec, 1")
    e(f"buffer_store_dword {vtmp}, {vZERO}, {SRD_WS}, {sT[2]} offen sc1")
    e("s_mov_b64 exec, -1")
    g.join([st, g.state()])
    g.label(f"L_sig_{uniq}")


order = [t for t in range(28) if (t & 3) < 2] + [t for t in range(28) if (t & 3) >= 2]


def q_loads_n(n):
    t = order[n]
    seg, u = t >> 2, t & 3
    e(f"ds_read_b128 {vr(QX_+4*(n%8),4)}, {vXA[u]} offset:{L_X+seg*1024}")
    for h in range(2):
        e(f"ds_read_b64_tr_b16 {vr(QW_+4*(n%8)+2*h,2)}, {vWA if u<2 else vWB} offset:{seg*8192+(u&1)*2048+h*512}")


def poll1_issue():
    ld4("v[96:99]", vF1, "0")
    ld4("v[100:103]", vF1, "0", 16)


for n in range(4):
    q_loads_n(n)
CSP = 144
csp = [144 + i for i in range(8)] + [168 + i for i in range(8)]
QSCALE = 28 ** -0.5 * 1.4426950408889634
for n in range(28):
    if n + 4 < 28:
        q_loads_n(n + 4)
    mfma32(vr(QACC, 16), vr(QW_ + 4 * (n % 8), 4), vr(QX_ + 4 * (n % 8), 4), vr(QACC, 16) if n else "0")
    if n < 14:
        mfma32(vr(QCS, 16), vr(QW_ + 4 * (n % 8), 4), ONES, vr(QCS, 16) if n else "0")
    if n == 2:
        for rt in range(2):
            e(f"ds_read_b64 {vr(XRES+4*rt,2)}, {vXR0} offset:{L_X+rt*4*XB}")
            e(f"ds_read_b64 {vr(XRES+4*rt+2,2)}, {vXR1} offset:{L_X+rt*4*XB}")
        e(f"ds_read_b64 v[136:137], {vQST}")
    if n == 9:
        e(f"s_cmp_lg_u32 {sW}, 0")
        e("s_cbranch_scc1 L_p1_np")
        stA = g.state()
        poll1_issue()
        g.join([stA, g.state()])
        g.label("L_p1_np")
    if n == 24:
        e(f"ds_read_b32 {vT5}, {vZERO} offset:{L_MISC}")
    if n == 27:
        e(f"v_readfirstlane_b32 {sNONCE}, {vT5}")
    if n == 6:
        e(f"v_mul_f32 v137, {f2u(QSCALE):#x}, v137")
        e(f"v_mul_f32 v136, v136, v137")
    if 16 <= n < 20:
        e("s_mov_b32 exec_lo, 1")
        e("s_mov_b32 exec_hi, 1")
        e(f"ds_write_b128 {vCSW}, {vr(QCS+4*(n-16),4)} offset:{L_CSX+(n-16)*16}")
        e("s_mov_b64 exec, -1")
    if n == 20:
        g.barrier()
        for i in range(4):
            e(f"ds_read_b128 {vr(csp[4*i],4)}, {vCSR} offset:{L_CSX+i*16}")
    if 23 <= n < 27:
        for r in range(4 * (n - 23), 4 * (n - 23) + 4):
            e(f"v_add_f32 v{QCS+r}, v{QCS+r}, v{csp[r]}")
            e(f"v_mul_f32 v{QCS+r}, v136, v{QCS+r}")
stamp("qgemm")
for r in range(16):
    e(f"v_fma_f32 v{QACC+r}, v{QACC+r}, v137, -v{QCS+r}")
for r in range(12, 16):
    e(f"v_cndmask_b32 v{QACC+r}, v{QACC+r}, {vZERO}, {sMASKH}")
for r in range(8):
    e(f"v_cvt_pk_bf16_f32 v{48+r}, v{QACC+2*r}, v{QACC+2*r+1}")
e(f"ds_write_b128 {vQXW}, v[48:51] offset:{L_QX}")
e(f"ds_write_b128 {vQXW}, v[52:55] offset:{L_QX+1024}")
e(f"v_add_f32 v58, abs(v{QACC}), abs(v{QACC+1})")
e(f"v_add_f32 v59, abs(v{QACC+2}), abs(v{QACC+3})")
for r in range(4, 16, 2):
    e(f"v_add_f32 v58, v58, abs(v{QACC+r})")
    e(f"v_add_f32 v59, v59, abs(v{QACC+r+1})")
e("v_add_f32 v58, v58, v59")
e(f"ds_write_b32 {vQNW}, v58 offset:{L_QN}")
e(f"s_cmp_lg_u32 {sW}, 0")
e("s_cbranch_scc1 L_p1_b5")
stA = g.state()
e(f"s_mov_b32 {sSPIN}, 0")
g.label("L_f1_chk")
g.wait_regs("v[96:103]")
e(f"v_xor_b32 v96, {sNONCE}, v96")
e(f"v_xor_b32 v98, {sNONCE}, v98")
e(f"v_xor_b32 v100, {sNONCE}, v100")
e(f"v_xor_b32 v102, {sNONCE}, v102")
e("v_or3_b32 v96, v96, v98, v100")
e("v_or_b32 v96, v96, v102")
e("v_cmp_ne_u32 vcc, 0, v96")
e("s_cbranch_vccz L_f1_ok")
spin_guard("L_f1_ok")
poll1_issue()
e("s_waitcnt vmcnt(0)")
e("s_branch L_f1_chk")
g.label("L_f1_ok")
pcount("poll1")
e("v_max3_u32 v97, v97, v99, v101")
e("v_max_u32 v97, v97, v103")
e(f"ds_write_b32 {vBL}, v97 offset:{L_SQ}")
g.join([stA, g.state()])
g.label("L_p1_b5")
stamp("preB5")
g.barrier()
stamp("B5")


NB, AKV = int(opt("--nb", 6)), 112


def kv_load(kt):
    b = AKV + 16 * (kt % NB)
    e(f"s_add_u32 {sT[15]}, {sKV}, {sKO[0]}")
    for i in range(4):
        ld4(ar(b + 4 * i, 4), vL16, sT[15], 1024 * i)
    e(f"s_addk_i32 {sKO[0]}, 4096")
    e(f"s_and_b32 {sKO[0]}, {sKO[0]}, 0xffff")


for kt in range(2):
    kv_load(kt)
for s in range(4):
    e(f"s_add_u32 {sT[2]}, {sW}, {s+1}")
    e(f"s_and_b32 {sT[2]}, {sT[2]}, 3")
    e(f"s_lshl_b32 {sT[2]}, {sT[2]}, 11")
    e(f"v_add_u32 {vT0}, {sT[2]}, {vL16}")
    e(f"ds_read_b128 {ar(AQ+8*s,4)}, {vT0} offset:{L_QX}")
    e(f"ds_read_b128 {ar(AQ+8*s+4,4)}, {vT0} offset:{L_QX+1024}")
e(f"v_and_b32 {vT0}, 31, {vLANE}")
e(f"v_lshlrev_b32 {vT0}, 2, {vT0}")
e(f"v_add_u32 {vT0}, {L_QN}, {vT0}")
for k in range(4):
    e(f"ds_read2_b32 {vr(24+2*k,2)}, {vT0} offset0:{64*k} offset1:{64*k+32}")
e(f"v_lshlrev_b32 {vT1}, 2, {vLANE}")
e(f"ds_read_b32 v32, {vT1} offset:{L_SQ}")
for k in range(4):
    e(f"v_add_f32 v{24+2*k}, v{24+2*k}, v{25+2*k}")
e("v_max3_f32 v24, v24, v26, v28")
e("v_max_f32 v24, v24, v30")
wave_max_u32("v32", sT[3], sT[2])
e(f"v_mul_f32 v24, {sT[2]}, v24")
setup_bases()
e(f"v_cmp_ngt_f32 vcc, {f2u(96.0):#x}, v24")
if FORCE_SLOW:
    e("s_branch L_slow")
else:
    e("s_cbranch_vccnz L_slow")
st_slow = g.state()


def poll3_issue():
    e(f"v_and_b32 {vT4}, 7, {vLANE}")
    e(f"v_lshlrev_b32 {vT4}, 2, {vT4}")
    e(f"s_lshl_b32 {sT[2]}, {sG}, 7")
    e(f"s_add_u32 {sT[2]}, {sT[2]}, {WS_FLAG3}")
    e(f"buffer_load_dword {vT5}, {vT4}, {SRD_WS}, {sT[2]} offen sc1")


def poll3_check(uniq):
    e(f"s_mov_b32 {sSPIN}, 0")
    g.label(f"L_p3c_{uniq}")
    e(f"v_cmp_ne_u32 vcc, {sNONCE}, {vT5}")
    e(f"s_cbranch_vccz L_p3k_{uniq}")
    st = g.state()
    spin_guard(f"L_p3k_{uniq}")
    e("s_sleep 4")
    poll3_issue()
    e("s_waitcnt vmcnt(0)")
    e(f"s_branch L_p3c_{uniq}")
    g.set_state(st)
    g.label(f"L_p3k_{uniq}")


def sentinel_ops():
    ops = []
    for f in range(2):
        ops.append(lambda f=f: st4(vr(SENT, 4), vL16, sOFW, f * 1024, tag="sent"))
    ops.append(lambda: st4(vr(SENT, 4), vHL16, sHFW, tag="sent"))

    def h1():
        e(f"s_add_u32 {sT[4]}, {sHFW}, {28*1024}")
        st4(vr(SENT, 4), vHL16, sT[4], tag="sent")
    ops.append(h1)
    return ops


def weave(vm, fill, per=64):
    k = 0
    for op, n in vm:
        op()
        left = per * n
        while left > 0 and k < len(fill):
            fill[k][0]()
            left -= fill[k][1]
            k += 1
    for op, _ in fill[k:]:
        op()


def reg(h, n):
    return vr(h[1], n) if h[0] == "v" else ar(h[1], n)


def w1home(t):
    return ("a", 8 * t) if t < 14 else (("a", 160 + 8 * (t - 14)) if t < 22 else ("v", 196 + 8 * (t - 22)))


def w2home(t):
    if t < 6:
        return ("a", 112 + 8 * t)
    if t < 10:
        return ("a", AQ + 8 * (t - 6))
    if t < 17:
        return ("v", 140 + 8 * (t - 10))
    return ("a", 8 * (t - 17))


def wohome(t):
    return ("a", 144 + 8 * t) if t < 2 else (("a", AQ + 8 * (t - 2)) if t < 6 else ("v", 148 + 8 * (t - 6)))


ACC5 = [160, 176, 192, 208]
ACS = 112


def stage_dma(mat, t, off, tag):
    e(f"s_add_u32 m0, {sLB}, {off}")
    if mat == 1:
        e(f"s_add_u32 {sT[6]}, {sW1B}, {t*16*3584}")
        dma(vD3584, SRD_W1, sT[6], 0, tag=tag)
        dma(vD3584b, SRD_W1, sT[6], 1024, tag=tag)
    elif mat == 2:
        if t % 4 == 0 or t in (11, 22):
            e(f"s_mul_i32 {sT[9]}, {sROT7[t//4]}, 14")
            e(f"s_add_u32 {sT[9]}, {sT[9]}, {sW2B}")
        e(f"s_add_u32 {sT[6]}, {sT[9]}, {(t%4)*16*896}")
        dma(vD896, SRD_W2, sT[6], 0, tag=tag)
        dma(vD896b, SRD_W2, sT[6], 1024, tag=tag)
    else:
        e(f"s_add_u32 {sT[6]}, {sWOB}, {t*16*896}")
        dma(vD896, SRD_WO, sT[6], 0, tag=tag)
        dma(vD896b, SRD_WO, sT[6], 1024, tag=tag)


def stage_tr(home, a0, a1, off):
    for c, ad in enumerate((a0, a1)):
        for hf in range(2):
            e(f"ds_read_b64_tr_b16 {reg((home[0], home[1]+4*c+2*hf), 2)}, {ad} offset:{off+hf*1024}")


def touch(srdn, per_wave, i):
    e(f"s_mul_i32 {sT[2]}, {sTCH}, {per_wave}")
    if i:
        e(f"s_add_u32 {sT[2]}, {sT[2]}, {i*3200}")
    e(f"buffer_load_dword {vDUM}, {vTCH}, {srdn}, {sT[2]} offen")


def w1_round_dma(ts, tag):
    return [lambda t=t, k=k: stage_dma(1, t, A_STG + 2048 * k, tag) for k, t in enumerate(ts)]


def w1_round_tr(ts, tag):
    def f(t, k):
        if k == 0:
            g.wait_tag(tag)
        stage_tr(w1home(t), vTR1, vTR1b, A_STG + 2048 * k)
    return [lambda t=t, k=k: f(t, k) for k, t in enumerate(ts)]


extras = {i: [] for i in range(-1, 70)}
for k, op in enumerate(sentinel_ops()):
    if not NOSENT or k == 0:
        extras[10 + 8 * k].append(op)
extras[46].append(lambda: (g.wait_tag("sent"), last_wave_signal_begin(12, vT6)))
extras[47].append(lambda: signal_end(vT6, 3, "f3"))
extras[54].append(poll3_issue)
extras[60].append(lambda: poll3_check("a"))
T0, TD = int(opt("--t0", 2)), int(opt("--td", 5))
if TOUCH:
    tl = [lambda: touch(SRD_WO, 3136, 0)] + [lambda i=i: touch(SRD_W1, 12544, i) for i in range(4)] + \
         [lambda i=i: touch(SRD_W2, 12544, i) for i in range(4)]
    for k, op in enumerate(tl):
        extras[T0 + TD * k + (TD if k >= 5 else 0)].append(op)
for t in range(7):
    extras[14 + 2 * t].append(lambda t=t: stage_dma(0, t, A_WO + 2048 * t, "wo"))
for st0_, ops in ((30, w1_round_dma(range(0, 4), "w1a")), (37, w1_round_tr(range(0, 4), "w1a")),
                  (42, w1_round_dma(range(4, 8), "w1b")), (50, w1_round_tr(range(4, 8), "w1b")),
                  (55, w1_round_dma(range(8, 13), "w1c"))):
    for k, op in enumerate(ops):
        if k == 0 and st0_ in (42, 55):
            extras[st0_].append(g.wait_lds)
        extras[st0_ + k].append(op)
for kt in range(2, NB):
    extras[kt - 2].insert(0, lambda kt=kt: kv_load(kt))
for kt in range(16 - NB):
    extras[4 * kt + 5].insert(0, lambda kt=kt: kv_load(kt + NB))


def comb_addr(s):
    e(f"s_add_u32 {sT[2]}, {sW}, {s+1}")
    e(f"s_and_b32 {sT[2]}, {sT[2]}, 3")
    e(f"s_mul_i32 {sT[2]}, {sT[2]}, {AREA}")
    e(f"s_add_u32 {sT[2]}, {sT[2]}, {L_X+A_EXC+s*4096}")
    e(f"v_add_u32 {(vT0, vT1, vT2)[s]}, {sT[2]}, {vL16}")


def comb_write(s, q):
    e(f"ds_write_b128 {(vT0, vT1, vT2)[s]}, {vr(OA+16*s+4*q,4)} offset:{q*1024}")


extras[61].append(lambda: [comb_addr(s) for s in range(3)])


def qk(i, half):
    kt, s = i >> 2, i & 3
    b = AKV + 16 * (kt % NB)
    S = vr(S0 if i % 2 == 0 else S1, 16)
    if half == 0 and s == 0:
        g.wait_regs(ar(b, 16) if kt else ar(b, 8))
    mfma32(S, ar(b + 4 * half, 4), ar(AQ + 8 * s + 4 * half, 4), S if half else "0")


def pv(i, half):
    kt, s = i >> 2, i & 3
    b = AKV + 16 * (kt % NB) + 8
    O = vr(OA + 16 * s, 16)
    if half == 0 and s == 0:
        g.wait_regs(ar(b, 8))
    P = P0 if i % 2 == 0 else P1
    mfma32(O, ar(b + 4 * half, 4), vr(P + 4 * half, 4), "0" if (kt == 0 and half == 0) else O)


g.raw(".p2align 3")
g.hot = True
qk(0, 0)
qk(0, 1)
stamp("attn0")
for i in range(64):
    S = S0 if i % 2 == 0 else S1
    P = P0 if i % 2 == 0 else P1
    for quarter in range(4):
        if quarter < 2:
            if i + 1 < 64:
                qk(i + 1, quarter)
        elif i > 0:
            pv(i - 1, quarter - 2)
        for op in extras[i][quarter::4] if len(extras[i]) <= 4 else (extras[i] if quarter == 0 else []):
            op()
        if quarter == 0 and i in (4, 8, 16, 24, 32, 40, 48, 56):
            stamp(f"a{i}")
        if (i == 62 and quarter >= 1) or (i == 63 and quarter == 0):
            comb_write(0, (quarter + 3) % 4)
        if i == 63 and quarter >= 1:
            comb_write(1, quarter - 1)
        r0 = 4 * quarter
        for r in range(r0, r0 + 4):
            e(f"v_exp_f32 v{S+r}, v{S+r}")
        if quarter > 0:
            e(f"v_cvt_pk_bf16_f32 v{P+2*quarter-1}, v{S+r0-2}, v{S+r0-1}")
        e(f"v_cvt_pk_bf16_f32 v{P+2*quarter}, v{S+r0}, v{S+r0+1}")
        if quarter == 3:
            e(f"v_cvt_pk_bf16_f32 v{P+7}, v{S+14}, v{S+15}")
pv(63, 0)
comb_write(1, 3)
pv(63, 1)
g.hot = False
e("s_branch L_comb2")
g.label("L_comb")
for s in range(3):
    comb_addr(s)
for s in range(2):
    for q in range(4):
        comb_write(s, q)
g.label("L_comb2")
stamp("attn1")
for q in range(4):
    comb_write(2, q)
e(f"v_add_u32 {vT0}, {sLB}, {vL16}")
OWN = OA + 48
g.barrier()
for q in range(4):
    for s in range(3):
        e(f"ds_read_b128 {vr(OA+16*s+4*q,4)}, {vT0} offset:{A_EXC+s*4096+((q+3)%4)*0+q*1024}")
for r in (12, 14, 0, 2, 4, 6, 8, 10):
    for s in range(3):
        e(f"v_pk_add_f32 {vr(OWN+r,2)}, {vr(OWN+r,2)}, {vr(OA+16*s+r,2)}")
    if r == 14:
        e(f"v_mov_b32 {vT0}, v{OWN+12}")
        e(f"v_mov_b32 {vT2}, v{OWN+12}")
        e(f"v_permlane32_swap_b32 {vT0}, {vT2}")
        e(f"v_rcp_f32 {vT1}, {vT2}")
for f in range(2):
    for r in range(8 * f, 8 * f + 8, 2):
        e(f"v_pk_mul_f32 {vr(OWN+r,2)}, {vr(OWN+r,2)}, v[8:9] op_sel_hi:[1,0]")
    for r in range(4 * f, 4 * f + 4):
        e(f"v_cvt_pk_bf16_f32 v{S0+r}, v{OWN+2*r}, v{OWN+2*r+1}")
    if f:
        e(f"v_cndmask_b32 v{S0+6}, v{S0+6}, {vZERO}, {sMASKH}")
        e(f"v_cndmask_b32 v{S0+7}, v{S0+7}, {vZERO}, {sMASKH}")
    st4(vr(S0 + 4 * f, 4), vL16, sOFW, 1024 * f)
stamp("ostore")
e(f"s_cmp_eq_u32 {sJ}, 7")
e("s_cbranch_scc1 L_fin7")
OFR = [20 + 4 * i for i in range(12)] + [132 + 4 * i for i in range(4)]
ACC3 = OA
ONES2 = vr(180, 4)


def cs_mfma(t):
    hm = w1home(t)
    for c in range(2):
        mfma32(ar(ACS + 16 * c, 16), reg((hm[0], hm[1] + 4 * c), 4), ONES2, ar(ACS + 16 * c, 16) if t else "0")


def o_load_ops():
    ops = []
    for rt in range(2):
        for hl in range(4):
            def f(rt=rt, hl=hl):
                e(f"s_add_u32 {sT[2]}, {sOFR}, {sRO[hl]}")
                for f_ in range(2):
                    ld4(vr(OFR[8 * rt + 2 * hl + f_], 4), vT5 if rt else vL16, sT[2], 1024 * f_)
            ops.append(f)
    return ops


def wo_tr(hl):
    e(f"v_add_u32 {vT1}, {sRL[hl]}, {vTR2}")
    e(f"v_add_u32 {vT2}, {sRL[hl]}, {vTR2b}")
    for f in range(2):
        stage_tr(wohome(2 * hl + f), vT1, vT2, A_WO + 2048 * f)


for op in w1_round_tr(range(8, 13), "w1c"):
    op()
for i in range(4):
    e(f"v_mov_b32 v{180+i}, 0x3f803f80")
e(f"v_add_u32 {vT5}, 0x8000, {vL16}")
g.barrier()
g.wait_tag("wo")
weave([(op, 2) for op in w1_round_dma(range(13, 18), "w1d") + o_load_ops()],
      [(lambda hl=hl: wo_tr(hl), 48) for hl in range(4)] + [(lambda t=t: cs_mfma(t), 64) for t in range(13)])
stamp("oissue")
e(f"s_mov_b32 {sSPIN}, 0")


def exch_addr(delta, dst, off):
    e(f"s_xor_b32 {sT[2]}, {sW}, {delta}")
    e(f"s_mul_i32 {sT[2]}, {sT[2]}, {AREA}")
    e(f"s_add_u32 {sT[2]}, {sT[2]}, {L_X+off+(delta-1)*4096}")
    e(f"v_add_u32 {dst}, {sT[2]}, {vL16}")


vEX = [vT1, vT2, vT4]
for d in range(1, 4):
    exch_addr(d, vEX[d - 1], A_EXC)
for op in w1_round_tr(range(13, 18), "w1d"):
    op()
g.label("L_p3_body")
e(f"v_mov_b32 {vCHK}, 0")
for rt in range(2):
    for t in range(8):
        B = OFR[8 * rt + t]
        hm = wohome(t)
        for a in range(2):
            acc = vr(ACC3 + 32 * rt + 16 * a, 16)
            mfma32(acc, reg((hm[0], hm[1] + 4 * a), 4), vr(B, 4), acc if t else "0")
            e(f"v_max3_u32 {vCHK}, {vCHK}, v{B+2*a}, v{B+2*a+1}")
        if rt == 0 and t == 2:
            g.wait_lds()
        if 8 * rt + t >= 4 and (8 * rt + t) % 2 == 0 and (8 * rt + t - 4) // 2 < 5:
            w1_round_dma(range(18, 23), "w1e")[(8 * rt + t - 4) // 2]()
        if rt == 1 and 2 <= t < 8:
            d, q = 1 + (t - 2) // 2, t % 2
            e(f"ds_write_b128 {vEX[d-1]}, {vr(ACC3+16*(d&1)+8*(d>>1)+4*q,4)} offset:{q*1024}")
e(f"v_cmp_eq_u32 vcc, -1, {vCHK}")
e("s_cbranch_vccz L_p3_ok")
st = g.state()
spin_guard("L_p3_ok")
e("s_sleep 2")
for op in o_load_ops():
    op()
e("s_waitcnt vmcnt(0)")
e("s_branch L_p3_body")
g.set_state(st)
g.label("L_p3_ok")
stamp("p3gemm")
pcount("p3")
XU = 20
for rt in range(2):
    for i in range(4):
        e(f"v_lshlrev_b32 v{XU+8*rt+2*i}, 16, v{XRES+4*rt+i}")
        e(f"v_and_b32 v{XU+8*rt+2*i+1}, 0xffff0000, v{XRES+4*rt+i}")
for d in range(1, 4):
    for q in range(2):
        e(f"ds_write_b128 {vEX[d-1]}, {vr(ACC3+32+16*(d&1)+8*(d>>1)+4*q,4)} offset:{2048+q*1024}")
for rt in range(2):
    for r in range(0, 8, 2):
        e(f"v_pk_add_f32 {vr(ACC3+32*rt+r,2)}, {vr(ACC3+32*rt+r,2)}, {vr(XU+8*rt+r,2)}")
e(f"v_add_u32 {vT0}, {sLB}, {vL16}")
e(f"s_add_u32 {sT[4]}, {sHFW}, {28*1024}")
g.barrier()
RB = 20
for rt in range(2):
    for d in range(3):
        for q in range(2):
            e(f"ds_read_b128 {vr(RB+24*rt+8*d+4*q,4)}, {vT0} offset:{A_EXC+d*4096+rt*2048+q*1024}")
for rt in range(2):
    A = ACC3 + 32 * rt
    for d in range(3):
        for r in range(0, 8, 2):
            e(f"v_pk_add_f32 {vr(A+r,2)}, {vr(A+r,2)}, {vr(RB+24*rt+8*d+r,2)}")
    for i in range(4):
        e(f"v_cvt_pk_bf16_f32 v{XRES+4*rt+i}, v{A+2*i}, v{A+2*i+1}")
    e(f"buffer_store_dwordx4 {vr(XRES+4*rt,4)}, {vL16}, {SRD_WS}, {sT[4] if rt else sHFW} offen sc1")
stamp("hstore")
HS = 20


def h_load_ops():
    def f(t):
        if t % 4 == 0:
            e(f"s_add_u32 {sT[2]}, {sHFR}, {t*1024}")
        ld4(vr(HS + 4 * t, 4), vL16, sT[2], (t % 4) * 1024)
    return [lambda t=t: f(t) for t in range(14)]


def cs_out():
    e(f"s_lshl_b32 {sT[3]}, {sW}, 8")
    e(f"v_lshrrev_b32 {vT0}, 5, {vLANE}")
    e(f"v_lshl_add_u32 {vT0}, {vT0}, 4, {sT[3]}")
    e("s_mov_b32 exec_lo, 1")
    e("s_mov_b32 exec_hi, 1")
    for c in range(2):
        for q in range(4):
            e(f"ds_write_b128 {vT0}, {ar(ACS+16*c+4*q,4)} offset:{L_MX+c*128+q*32}")
    e("s_mov_b64 exec, -1")
    e(f"v_and_b32 {vT2}, 31, {vLANE}")
    e(f"v_lshl_add_u32 {vT0}, {vT2}, 2, {sT[3]}")
    e(f"ds_read_b32 v84, {vT0} offset:{L_MX}")
    e(f"ds_read_b32 v85, {vT0} offset:{L_MX+128}")


def poll4_issue():
    e(f"s_lshl_b32 {sT[3]}, {sG}, 7")
    e(f"s_add_u32 {sT[3]}, {sT[3]}, {WS_FLAG4}")
    e(f"buffer_load_dword v86, {vZERO}, {SRD_WS}, {sT[3]} offen sc1")


for op in w1_round_tr(range(18, 23), "w1e"):
    op()
g.wait_lds()
weave([(op, 2) for op in w1_round_dma(range(23, 28), "w1f")] + [(op, 1) for op in h_load_ops()] + [(poll4_issue, 0)],
      [(lambda t=t: cs_mfma(t), 64) for t in range(13, 23)] + [(op, 20) for op in w1_round_tr(range(23, 28), "w1f")] +
      [(lambda t=t: cs_mfma(t), 64) for t in range(23, 28)])
stamp("w5fill")
cs_out()
e(f"v_add_u32 {vT1}, {sLB}, {vL16}")
e(f"s_mov_b32 {sSPIN}, 0")
g.label("L_p4_body")
e(f"v_mov_b32 {vCHK}, 0")
for t in range(14):
    B = HS + 4 * t
    e(f"ds_write_b128 {vT1}, {vr(B,4)} offset:{A_WO+t*1024}")
    e(f"v_max3_u32 {vCHK}, {vCHK}, v{B}, v{B+1}")
    e(f"v_max3_u32 {vCHK}, {vCHK}, v{B+2}, v{B+3}")
    for i in range(4):
        a, q = ("v76", "v77") if i % 2 == 0 else ("v78", "v79")
        first = t == 0 and i < 2
        e(f"v_dot2_f32_bf16 {a}, v{B+i}, v180, {'0' if first else a}")
        e(f"v_dot2_f32_bf16 {q}, v{B+i}, v{B+i}, {'0' if first else q}")
e(f"v_cmp_eq_u32 vcc, -1, {vCHK}")
e("s_cbranch_vccz L_p4_ok")
st = g.state()
spin_guard("L_p4_ok")
e("s_sleep 2")
for op in h_load_ops():
    op()
e("s_waitcnt vmcnt(0)")
e("s_branch L_p4_body")
g.set_state(st)
g.label("L_p4_ok")
e("v_pk_add_f32 v[76:77], v[76:77], v[78:79]")
e(f"v_lshlrev_b32 {vT0}, 3, {vLANE}")
e(f"s_lshl_b32 {sT[2]}, {sW}, 9")
e(f"v_add_u32 {vT0}, {sT[2]}, {vT0}")
e(f"ds_write_b64 {vT0}, v[76:77] offset:{L_SQ}")
e(f"s_mov_b32 {sSPIN}, 0")
g.label("L_p4c")
e(f"v_cmp_ne_u32 vcc, {sNONCE}, v86")
e("s_cbranch_vccz L_p4k")
st = g.state()
spin_guard("L_p4k")
e("s_sleep 4")
poll4_issue()
e("s_waitcnt vmcnt(0)")
e("s_branch L_p4c")
g.set_state(st)
g.label("L_p4k")
stamp("hload")
pcount("p4")
g.barrier()
stamp("B7")
ACC1 = [20, 108]
BR, B1R, GT, PKR = 52, 68, 84, 92
AEX, BEX = [188, 192], [244, 248]
vRS = ["v104", "v105"]
vC0, vB1A = "v106", "v107"
vHB = [vT0, vT1, vT4, vT5]
e(f"v_lshlrev_b32 {vT2}, 3, {vT2}")
e(f"v_add_u32 {vT2}, {L_SQ}, {vT2}")
for rt in range(2):
    e(f"ds_read2_b64 {vr(B1R+8*rt,4)}, {vT2} offset0:{rt*64} offset1:{rt*64+32}")
    e(f"ds_read2_b64 {vr(B1R+8*rt+4,4)}, {vT2} offset0:{rt*64+128} offset1:{rt*64+160}")
for k in range(4):
    e(f"v_add_u32 {vHB[k]}, {L_X+k*AREA+A_WO}, {vL16}")
bcount = [0]


def b_read(rt, t):
    n = bcount[0]
    bcount[0] += 1
    e(f"ds_read_b128 {vr(BR+4*(n%4),4)}, {vHB[2*(t//14)+rt]} offset:{(t%14)*1024}")


bseq = [(0, t) for t in range(28)] + [(0, t) for t in range(28)] + [(1, t) for t in range(28)]
for n in range(3):
    b_read(*bseq[n])
C0 = -2.0 * (2 / 3.141592653589793) ** 0.5 * 1.4426950408889634
C1 = C0 * 0.044715


def ln2_ops():
    ops = []
    A = ops.append
    for c in range(2):
        A(f"v_cvt_pk_bf16_f32 v86, v{84+c}, {vZERO}")
        A(f"v_lshlrev_b32 v87, 16, v86")
        A(f"v_sub_f32 v87, v{84+c}, v87")
        A(f"v_cvt_pk_bf16_f32 v{AEX[c]}, v{84+c}, v87")
        A(f"v_mov_b32 v{AEX[c]+1}, v86")
        A(f"v_mov_b32 v{AEX[c]+2}, 0")
        A(f"v_mov_b32 v{AEX[c]+3}, 0")
    for rt in range(2):
        T = B1R + 8 * rt
        A(f"v_pk_add_f32 {vr(T,2)}, {vr(T,2)}, {vr(T+2,2)}")
        A(f"v_pk_add_f32 {vr(T+4,2)}, {vr(T+4,2)}, {vr(T+6,2)}")
        A(f"v_pk_add_f32 {vr(T,2)}, {vr(T,2)}, {vr(T+4,2)}")
        A(f"v_mul_f32 v{T}, {f2u(-1/448):#x}, v{T}")
        A(f"v_mul_f32 v{T+1}, {f2u(1/448):#x}, v{T+1}")
        A(f"v_fma_f32 v{T+1}, -v{T}, v{T}, v{T+1}")
        A(f"v_max_f32 v{T+1}, 0, v{T+1}")
        A(f"v_add_f32 v{T+1}, {f2u(1e-5):#x}, v{T+1}")
        A(f"v_rsq_f32 {vRS[rt]}, v{T+1}")
        A(f"v_cvt_pk_bf16_f32 v{BEX[rt]}, v{T}, v{T}")
        A(f"v_lshlrev_b32 v{T+2}, 16, v{BEX[rt]}")
        A(f"v_sub_f32 v{T+2}, v{T}, v{T+2}")
        A(f"v_cvt_pk_bf16_f32 v{BEX[rt]+1}, v{T+2}, {vZERO}")
        A(f"v_cndmask_b32 v{BEX[rt]}, v{BEX[rt]}, {vZERO}, {sMASKH}")
        A(f"v_cndmask_b32 v{BEX[rt]+1}, v{BEX[rt]+1}, {vZERO}, {sMASKH}")
        A(f"v_mov_b32 v{BEX[rt]+2}, 0")
        A(f"v_mov_b32 v{BEX[rt]+3}, 0")
    A(f"v_mov_b32 {vC0}, {f2u(C0):#x}")
    A(f"v_lshrrev_b32 {vB1A}, 5, {vLANE}")
    A(f"v_lshlrev_b32 {vB1A}, 4, {vB1A}")
    A(f"s_lshl_b32 {sT[2]}, {sW}, 8")
    A(f"v_add_u32 {vB1A}, {sT[2]}, {vB1A}")
    A(f"s_add_u32 {sT[5]}, {sHIDW}, {112*1024}")
    return [lambda x=x: e(x) for x in ops]


def gelu_ops(rt, c, pk=False):
    ops = []
    A = ACC1[rt] + 16 * c
    for q in range(4):
        ops.append(lambda q=q: e(f"ds_read_b128 {vr(B1R+4*q,4)}, {vB1A} offset:{L_B1+c*128+q*32}"))
    for grp in range(4):
        rs = [A + 4 * grp + i for i in range(4)]
        ts = [GT + 4 * (grp % 2) + i for i in range(4)]
        P2 = lambda x: vr(x, 2)
        if not pk:
            seq = [lambda r, t_: [f"v_fma_f32 v{r}, v{r}, {vRS[rt]}, v{B1R+r-A}"],
                   lambda r, t_: [f"v_mul_f32 v{t_}, v{r}, v{r}"],
                   lambda r, t_: [f"v_fmamk_f32 v{t_}, v{t_}, {f2u(C1):#x}, {vC0}"],
                   lambda r, t_: [f"v_mul_f32 v{t_}, v{t_}, v{r}"],
                   lambda r, t_: [f"v_exp_f32 v{t_}, v{t_}"],
                   lambda r, t_: [f"v_add_f32 v{t_}, 1.0, v{t_}"],
                   lambda r, t_: [f"v_rcp_f32 v{t_}, v{t_}"],
                   lambda r, t_: [f"v_mul_f32 v{r}, v{r}, v{t_}"]]
        else:
            ev = lambda r, x: [x] if r % 2 == 0 else []
            seq = [lambda r, t_: ev(r, f"v_pk_fma_f32 {P2(r)}, {P2(r)}, v[104:105], {P2(B1R+r-A)} op_sel:[0,{rt},0] op_sel_hi:[1,{rt},1]"),
                   lambda r, t_: ev(r, f"v_pk_mul_f32 {P2(t_)}, {P2(r)}, {P2(r)}"),
                   lambda r, t_: ev(r, f"v_pk_fma_f32 {P2(t_)}, {P2(t_)}, v[100:101], v[106:107] op_sel_hi:[1,0,0]"),
                   lambda r, t_: ev(r, f"v_pk_mul_f32 {P2(t_)}, {P2(t_)}, {P2(r)}"),
                   lambda r, t_: [f"v_exp_f32 v{t_}, v{t_}"],
                   lambda r, t_: ev(r, f"v_pk_add_f32 {P2(t_)}, {P2(t_)}, v[100:101] op_sel:[0,1] op_sel_hi:[1,1]"),
                   lambda r, t_: [f"v_rcp_f32 v{t_}, v{t_}"],
                   lambda r, t_: ev(r, f"v_pk_mul_f32 {P2(r)}, {P2(r)}, {P2(t_)}")]
        for fn in seq:
            for r, t_ in zip(rs, ts):
                for x in fn(r, t_):
                    ops.append(lambda x=x: e(x))
        PK = PKR + 4 * (grp >> 1)
        for i in range(2):
            ops.append(lambda PK=PK, grp=grp, i=i, rs=rs: e(f"v_cvt_pk_bf16_f32 v{PK+2*(grp&1)+i}, v{rs[2*i]}, v{rs[2*i+1]}"))
        if grp & 1:
            ops.append(lambda PK=PK, f=grp >> 1: st4(vr(PK, 4), vL16, sT[5] if rt else sHIDW, c * 2048 + f * 1024))
    return ops


def w2slot(k):
    return A_EXC + 2048 * k if k < 6 else A_STG + 2048 * (k - 6)


def spread(ops, n, m, start=0):
    if m < start:
        return []
    a = (m - start) * len(ops) // (n - start)
    b = (m - start + 1) * len(ops) // (n - start)
    return ops[a:b]


def ffn1_mfma(rt, c, t, n):
    acc = vr(ACC1[rt] + 16 * c, 16)
    hm = w1home(t)
    mfma32(acc, reg((hm[0], hm[1] + 4 * c), 4), vr(BR + 4 * (n % 4), 4), acc if t else "0")


def ext_mfma(rt, c):
    acc = vr(ACC1[rt] + 16 * c, 16)
    mfma32(acc, vr(AEX[c], 4), vr(BEX[rt], 4), acc)


g.raw(".p2align 3")
g.hot = True
def tr2(k, slot, tag):
    g.wait_tag(tag)
    stage_tr(w2home(k), vTR2, vTR2b, w2slot(slot))


at = {m: [] for m in range(112)}
for k in range(11):
    at[4 * k if k < 7 else 28 + 3 * (k - 7)].append(lambda k=k: stage_dma(2, k, w2slot(k), f"w2a{k}"))
for k in range(11):
    at[(20 + 2 * k) if k < 4 else 30 + 2 * k].append(lambda k=k: tr2(k, k, f"w2a{k}"))
at[52].append(g.wait_lds)
for k in range(11, 22):
    at[52 + 37 * (k - 11) // 10].append(lambda k=k: stage_dma(2, k, w2slot(k - 11), f"w2b{k}"))
for k in range(11, 16):
    at[80 + 2 * (k - 11)].append(lambda k=k: tr2(k, k - 11, f"w2b{k}"))
at[93].append(g.wait_lds)
for k in range(22, 27):
    at[93 + 4 * (k - 22)].append(lambda k=k: stage_dma(2, k, w2slot(k - 22), f"w2c{k}"))
fill = ln2_ops()
for t in range(28):
    ffn1_mfma(0, 0, t, t)
    b_read(*bseq[t + 3])
    for op in at[t] + spread(fill, 20, t):
        op()
ext_mfma(0, 0)
stamp("ffn1q0")
fill = gelu_ops(0, 0)
for t in range(28):
    ffn1_mfma(0, 1, t, 28 + t)
    b_read(*bseq[28 + t + 3])
    for op in at[28 + t] + spread(fill, 28, t, 2):
        op()
ext_mfma(0, 1)
stamp("ffn1q1")
fill = gelu_ops(0, 1)
for t in range(28):
    for c in range(2):
        ffn1_mfma(1, c, t, 56 + t)
        if c == 0 and 56 + t + 3 < 84:
            b_read(*bseq[56 + t + 3])
        for op in at[56 + 2 * t + c] + spread(fill, 40, 2 * t + c, 2):
            op()
ext_mfma(1, 0)
ext_mfma(1, 1)
e("s_barrier")
stamp("ffn1b")
HR = 20


def hid_load(rt, t):
    if t % 4 == 0:
        e(f"s_add_u32 {sT[7+rt]}, {sHIDR}, {sROT7[t//4]}")
        if rt:
            e(f"s_add_u32 {sT[7+rt]}, {sT[7+rt]}, {112*1024}")
    ld4(vr(HR + 4 * t, 4), vL16, sT[7 + rt], (t % 4) * 1024)


tr2(16, 5, "w2b16")
e(f"v_mov_b32 v100, {f2u(C1):#x}")
e(f"v_mov_b32 v101, 1.0")
gops = gelu_ops(1, 0, True) + gelu_ops(1, 1, True)
EARLY = 12
E0 = int(opt("--e0", 40))
for k, op in enumerate(gops):
    op()
    if k == 8:
        g.wait_lds()
        stage_dma(2, 27, w2slot(5), "w2c27")
    if k >= E0 and (k - E0) % 12 == 0 and (k - E0) // 12 < EARLY:
        hid_load(0, (k - E0) // 12)
assert (len(gops) - 1 - E0) // 12 >= EARLY - 1, len(gops)
g.hot = False
stamp("gelu1")
LAG = 10
e(f"s_mov_b32 {sSPIN}, 0")
weave([(lambda t=t: hid_load(0, t), 1) for t in range(EARLY, 28)],
      [(lambda k=k: tr2(k, k - 11, f"w2b{k}"), 32) for k in range(17, 22)] +
      [(lambda k=k: tr2(k, k - 22, f"w2c{k}"), 32) for k in range(22, 28)] +
      [(lambda d=d: exch_addr(d, vEX[d - 1], A_WO), 16) for d in range(1, 4)])


def ffn2_step(rt, t):
    B = HR + 4 * t
    hm = w2home(t)
    for a in range(2):
        acc = ar(ACC5[2 * rt + a], 16)
        mfma32(acc, reg((hm[0], hm[1] + 4 * a), 4), vr(B, 4), acc if t else "0")
        e(f"v_max3_u32 {vCHK}, {vCHK}, v{B+2*a}, v{B+2*a+1}")


g.label("L_p5a_body")
e(f"v_mov_b32 {vCHK}, 0")
for t in range(28):
    ffn2_step(0, t)
    if t >= LAG:
        hid_load(1, t - LAG)
e(f"v_cmp_eq_u32 vcc, -1, {vCHK}")
e("s_cbranch_vccz L_p5a_ok")
st = g.state()
spin_guard("L_p5a_ok")
e("s_waitcnt vmcnt(0)")
e("s_sleep 2")
for t in range(28):
    hid_load(0, t)
e("s_waitcnt vmcnt(0)")
e("s_branch L_p5a_body")
g.set_state(st)
g.label("L_p5a_ok")
stamp("ffn2a")
pcount("p5a")
for t in range(28 - LAG, 28):
    hid_load(1, t)
FA = 196
e(f"s_lshl_b32 {sT[2]}, {sJ}, 7")
e(f"s_sub_u32 {sT[2]}, {sC}, {sT[2]}")
e(f"s_lshl_b32 {sT[2]}, {sT[2]}, 1")
e(f"v_lshrrev_b32 {vT5}, 5, {vLANE}")
e(f"v_lshl_add_u32 {vT0}, {vT5}, 4, {sT[2]}")
e(f"ds_read_b128 v[212:215], {vT0} offset:{L_B2}")
e(f"ds_read_b128 v[216:219], {vT0} offset:{L_B2+32}")
for d in range(1, 4):
    for q in range(2):
        e(f"ds_write_b128 {vEX[d-1]}, {ar(ACC5[d&1]+8*(d>>1)+4*q,4)} offset:{q*1024}")
for rt in range(2):
    for i in range(4):
        e(f"v_lshlrev_b32 v{FA+8*rt+2*i}, 16, v{XRES+4*rt+i}")
        e(f"v_and_b32 v{FA+8*rt+2*i+1}, 0xffff0000, v{XRES+4*rt+i}")
    for r in range(0, 8, 2):
        e(f"v_pk_add_f32 {vr(FA+8*rt+r,2)}, {vr(FA+8*rt+r,2)}, {vr(212+r,2)}")
for r in range(8):
    e(f"v_accvgpr_read_b32 v{220+r}, a{ACC5[0]+r}")
for r in range(0, 8, 2):
    e(f"v_pk_add_f32 {vr(FA+r,2)}, {vr(FA+r,2)}, {vr(220+r,2)}")
e(f"v_and_b32 {vT0}, 31, {vLANE}")
e(f"v_mul_u32_u24 {vT0}, 896, {vT0}")
e(f"v_lshl_add_u32 {vT5}, {vT5}, 4, {vT0}")
e(f"v_add_u32 {vT0}, {sLB}, {vL16}")
e(f"s_mul_i32 {sT[3]}, {sG}, {64*896}")
e(f"s_add_u32 {sT[3]}, {sT[3]}, {sC}")
e(f"s_add_u32 {sT[4]}, {sT[3]}, {32*896}")
e(f"s_mov_b32 {sSPIN}, 0")
g.label("L_p5b_body")
e(f"v_mov_b32 {vCHK}, 0")
for t in range(28):
    ffn2_step(1, t)
e(f"v_cmp_eq_u32 vcc, -1, {vCHK}")
e("s_cbranch_vccz L_p5b_ok")
st = g.state()
spin_guard("L_p5b_ok")
e("s_sleep 2")
for t in range(28):
    hid_load(1, t)
e("s_waitcnt vmcnt(0)")
e("s_branch L_p5b_body")
g.set_state(st)
g.label("L_p5b_ok")
stamp("ffn2b")
pcount("p5b")
for d in range(1, 4):
    for q in range(2):
        e(f"ds_write_b128 {vEX[d-1]}, {ar(ACC5[2+(d&1)]+8*(d>>1)+4*q,4)} offset:{2048+q*1024}")
for r in range(8):
    e(f"v_accvgpr_read_b32 v{220+r}, a{ACC5[2]+r}")
for r in range(0, 8, 2):
    e(f"v_pk_add_f32 {vr(FA+8+r,2)}, {vr(FA+8+r,2)}, {vr(220+r,2)}")
g.barrier()
for rt in range(2):
    for d in range(3):
        for q in range(2):
            e(f"ds_read_b128 {vr(RB+24*rt+8*d+4*q,4)}, {vT0} offset:{A_WO+d*4096+rt*2048+q*1024}")
for rt in range(2):
    A = FA + 8 * rt
    for d in range(3):
        for r in range(0, 8, 2):
            e(f"v_pk_add_f32 {vr(A+r,2)}, {vr(A+r,2)}, {vr(RB+24*rt+8*d+r,2)}")
    OQ = 96 + 4 * rt
    for i in range(4):
        e(f"v_cvt_pk_bf16_f32 v{OQ+i}, v{A+2*i}, v{A+2*i+1}")
    e(f"v_permlane32_swap_b32 v{OQ}, v{OQ+2}")
    e(f"v_permlane32_swap_b32 v{OQ+1}, v{OQ+3}")
    e(f"buffer_store_dwordx4 {vr(OQ,4)}, {vT5}, {SRD_OUT}, {sT[3+rt]} offen")

stamp("end")
if PROF:
    e("s_memrealtime s[42:43]")
    e("s_waitcnt lgkmcnt(0)")
    e("v_writelane_b32 v255, s42, 61")
if PROF:
    e(f"s_lshl_b32 {sT[2]}, s2, 2")
    e(f"s_add_u32 {sT[2]}, {sT[2]}, {sW}")
    e(f"s_lshl_b32 {sT[2]}, {sT[2]}, 8")
    e(f"s_add_u32 {sT[2]}, {sT[2]}, {WS_PROF}")
    e(f"v_lshlrev_b32 {vT0}, 2, {vLANE}")
    e(f"buffer_store_dword v255, {vT0}, {SRD_WS}, {sT[2]} offen")
    if "--dbg" in sys.argv:
        want = ["B1", "kvstore", "B3", "qgemm", "B5", "attn0", "a16", "a32", "attn1", "p3gemm", "hstore", "B7", "ffn1b", "ffn2a", "end"]
        e(f"s_cmp_lg_u32 s2, {int(sys.argv[sys.argv.index('--dbg')+1])}")
        e("s_cbranch_scc1 L_end")
        e(f"s_cmp_lg_u32 {sW}, 0")
        e("s_cbranch_scc1 L_end")
        e("v_readlane_b32 s16, v255, 0")
        for k, nme in enumerate(want):
            e(f"v_readlane_b32 s17, v255, {PROF_NAMES.index(nme)}")
            e("s_sub_u32 s17, s17, s16")
            e(f"v_writelane_b32 v250, s17, {k+1}")
        e("s_mov_b64 exec, 0xfffe")
        e(f"buffer_store_dword v250, {vT0}, {SRD_DBG}, 0 offen")
g.label("L_end")
e("s_endpgm")
g.label("L_fin7")
e(f"s_mul_i32 {sT[2]}, {sW}, {28*1024}")
e(f"s_add_u32 {sT[2]}, {sT[2]}, {sHIDR}")
e(f"s_mov_b32 {sT[3]}, 14")
g.label("L_fin7_loop")
for i in range(4):
    st4(vr(SENT, 4), vL16, sT[2], 1024 * i)
e(f"s_addk_i32 {sT[2]}, 4096")
e(f"s_sub_u32 {sT[3]}, {sT[3]}, 1")
e(f"s_cmp_lg_u32 {sT[3]}, 0")
e("s_cbranch_scc1 L_fin7_loop")
e("s_waitcnt vmcnt(0)")
e("s_barrier")
e(f"s_cmp_lg_u32 {sW}, 0")
e("s_cbranch_scc1 L_end")
e(f"s_lshl_b32 {sT[3]}, {sG}, 7")
e(f"s_add_u32 {sT[3]}, {sT[3]}, {WS_FLAG4}")
e(f"v_mov_b32 {vT0}, {sNONCE}")
e("s_mov_b64 exec, 1")
e(f"buffer_store_dword {vT0}, {vZERO}, {SRD_WS}, {sT[3]} offen sc1")
e("s_endpgm")

g.set_state(st_slow)
g.label("L_slow")
e("s_waitcnt vmcnt(0) lgkmcnt(0)")
for op in sentinel_ops():
    op()
e("s_waitcnt vmcnt(0)")
last_wave_signal_begin(12, vT6)
signal_end(vT6, 3, "f3s")
for t in range(7):
    stage_dma(0, t, A_WO + 2048 * t, "wo")
for ts in (range(0, 4), range(4, 8)):
    for op in w1_round_dma(ts, "w1s") + w1_round_tr(ts, "w1s"):
        op()
    g.wait_lds()
for op in w1_round_dma(range(8, 13), "w1c"):
    op()
poll3_issue()
poll3_check("b")
MM = 60
for s in range(4):
    e(f"v_mov_b32 v{MM+s}, 0xff7fffff")
    for r in range(16):
        e(f"v_mov_b32 v{OA+16*s+r}, 0")
e(f"s_mov_b32 {sT[8]}, 0")
g.label("L_slow_loop")
for i in range(4):
    ld4(vr(KVB + 4 * i, 4), vL16, sKV, i * 1024)
e("s_waitcnt vmcnt(0)")
for s in range(4):
    S = vr(S0, 16)
    mfma32(S, vr(KVB, 4), ar(AQ + 8 * s, 4), "0")
    mfma32(S, vr(KVB + 4, 4), ar(AQ + 8 * s + 4, 4), S)
    e(f"v_max3_f32 v64, v{S0}, v{S0+1}, v{MM+s}")
    for r in range(2, 16, 2):
        e(f"v_max3_f32 v64, v{S0+r}, v{S0+r+1}, v64")
    e("v_mov_b32 v65, v64")
    e("v_permlane32_swap_b32 v64, v65")
    e("v_max_f32 v64, v64, v65")
    e(f"v_sub_f32 v65, v{MM+s}, v64")
    e("v_exp_f32 v65, v65")
    e(f"v_mov_b32 v{MM+s}, v64")
    for r in range(16):
        e(f"v_sub_f32 v{S0+r}, v{S0+r}, v64")
        e(f"v_exp_f32 v{S0+r}, v{S0+r}")
        e(f"v_mul_f32 v{OA+16*s+r}, v65, v{OA+16*s+r}")
    for r in range(8):
        e(f"v_cvt_pk_bf16_f32 v{P0+r}, v{S0+2*r}, v{S0+2*r+1}")
    O = vr(OA + 16 * s, 16)
    mfma32(O, vr(KVB + 8, 4), vr(P0, 4), O)
    mfma32(O, vr(KVB + 12, 4), vr(P0 + 4, 4), O)
e(f"s_add_u32 {sKV}, {sKV}, 4096")
e(f"s_add_u32 {sT[8]}, {sT[8]}, 1")
e(f"s_cmp_lt_u32 {sT[8]}, 16")
e("s_cbranch_scc1 L_slow_loop")
e(f"v_lshlrev_b32 {vT1}, 2, {vLANE}")
for s in range(4):
    e(f"s_add_u32 {sT[2]}, {sW}, {s+1}")
    e(f"s_and_b32 {sT[2]}, {sT[2]}, 3")
    e(f"s_lshl_b32 {sT[2]}, {sT[2]}, 10")
    e(f"v_add_u32 v{64+s}, {sT[2]}, {vT1}")
    e(f"s_lshl_b32 {sT[3]}, {sW}, 8")
    e(f"v_add_u32 {vT0}, {sT[3]}, v{64+s}")
    e(f"ds_write_b32 {vT0}, v{MM+s} offset:{L_MX}")
g.barrier()
for s in range(4):
    for k in range(4):
        e(f"ds_read_b32 v{S0+k}, v{64+s} offset:{L_MX+k*256}")
    e(f"v_max3_f32 v{S0}, v{S0}, v{S0+1}, v{S0+2}")
    e(f"v_max_f32 v{S0}, v{S0}, v{S0+3}")
    e(f"v_sub_f32 v{S0}, v{MM+s}, v{S0}")
    e(f"v_exp_f32 v{S0}, v{S0}")
    for r in range(16):
        e(f"v_mul_f32 v{OA+16*s+r}, v{S0}, v{OA+16*s+r}")
g.barrier()
e("s_waitcnt vmcnt(0) lgkmcnt(0)")
e("s_branch L_comb")
g.label("L_code_end")

body = g.finish()
n, nbytes, nops = g.stats()
body = body.replace("0x11111,", "L_code_end-L_pcref-4,")

HEADER = open("cdna_kernels/" + KNAME[:-7] + ".s.ref").read().split("; Override launch")[0]
src = HEADER + f"""; One persistent launch, 256 workgroups (one per CU), hand-offs between workgroups through d_ws.
; @launch grid=(256,1,1) block=(256,1,1) lds={LDS_BYTES}
.amdgcn_target "amdgcn-amd-amdhsa--gfx950"
.text
.globl {KNAME}
.p2align 8
.type {KNAME},@function
{body}
.section .rodata,"a"
.p2align 6
.amdhsa_kernel {KNAME}
  .amdhsa_next_free_vgpr 512
  .amdhsa_next_free_sgpr 102
  .amdhsa_accum_offset 256
  .amdhsa_group_segment_fixed_size 0
  .amdhsa_kernarg_size 104
  .amdhsa_user_sgpr_count 2
  .amdhsa_user_sgpr_kernarg_segment_ptr 1
  .amdhsa_system_sgpr_workgroup_id_x 1
  .amdhsa_float_denorm_mode_32 3
.end_amdhsa_kernel
"""
out = [a for a in sys.argv[1:] if a.endswith(".s")]
out = out[0] if out else "k.s"
open(out, "w").write(src)
if PROF:
    open(out + ".names", "w").write("\n".join(PROF_NAMES))
print(f"{out}: {n} instructions, {nbytes} bytes, {nops} s_nop")
```

```python
import sys, struct
from asmgen import Gen

KNAME = "sequential_preLN__grouped_kv_mqa__dense_activation_gelu__prompt_kernel"
PROF = "--prof" in sys.argv
TOUCH = "--notouch" not in sys.argv
LATE_PP = "--latepp" in sys.argv
NOSENT = "--nosent" in sys.argv
FORCE_SLOW = "--slow" in sys.argv


def opt(name, default):
    return sys.argv[sys.argv.index(name) + 1] if name in sys.argv else default


def f2u(x):
    return struct.unpack("<I", struct.pack("<f", x))[0]


WS_FLAG1, WS_FLAG4, WS_FLAG3 = 0x0, 0x2000, 0x4000
WS_KV = 0x10000
WS_OF = 0x80000
WS_HF = 0x280000
WS_HID = 0x480000
WS_PROF = 0x1000000
WS_BYTES = 0x10000000
OOB = 0x7F000000
XB = 7296
L_MISC = 0
L_STATS = 256
L_B1 = 768
L_B2 = 1792
L_SQ = 2048
L_MX = 4096
L_QN = 7168
L_QX = 8192
L_X = 16384
L_WQ = L_X + 58368
L_WKV = L_WQ + 57344
L_CSX = L_MX
L_END = L_WKV + 25600
AREA, A_EXC, A_WO, A_STG = 36864, 0, 12288, 26624
LDS_BYTES = 160 * 1024
SPIN_MAX = 1 << 17

sW, sJ, sG, sNONCE = "s4", "s5", "s6", "s7"
SRD_X, SRD_WS, SRD_WQ, SRD_WKV, SRD_W2, SRD_OUT, SRD_DBG, SRD_B = (f"s[{i}:{i+3}]" for i in (8, 12, 44, 48, 52, 56, 60, 64))
sT = [f"s{i}" for i in range(68, 84)]
sKV, sOFW, sOFR, sHFW, sHFR, sHIDW, sHIDR, sWOB, sW1B, sW2B = (f"s{i}" for i in range(84, 94))
sSPIN, sQ16, sKIND, sC = "s94", "s95", "s96", "s97"
sMASKH = "s[98:99]"
SRD_WO, SRD_W1 = SRD_WQ, SRD_WKV
sLB = "s100"
sRET = "s101"
sROT7 = [f"s{i}" for i in range(16, 23)]
sRO = [f"s{i}" for i in range(23, 27)]
sRL = [f"s{i}" for i in range(27, 31)]
sTCH = "s31"
sFLG1 = "s40"
sKO = ["s41", "s101"]

g = Gen()
e = g.e


def vr(a, n=1):
    return f"v{a}" if n == 1 else f"v[{a}:{a+n-1}]"


def ar(a, n=1):
    return f"a{a}" if n == 1 else f"a[{a}:{a+n-1}]"


def srd(name, lo, nbytes):
    b = int(name[2:name.index(":")])
    e(f"s_mov_b32 s{b}, s{lo}")
    e(f"s_and_b32 s{b+1}, s{lo+1}, 0xffff")
    e(f"s_mov_b32 s{b+2}, {nbytes:#x}")
    e(f"s_mov_b32 s{b+3}, 0x20000")


vLANE, vL16 = "v0", "v1"
vZERO = "v2"
vD896, vD3584, vTR1, vD896b = "v3", "v4", "v5", "v6"
vT0, vT1, vT2 = "v7", "v8", "v9"
XRES = 10
vTR2, vTR2b = "v18", "v19"
S0, S1, P0, P1, OA, KVB, SENT = 20, 36, 52, 60, 68, 132, 244
vHL16, vT6, vTR1b, vD3584b = "v248", "v249", "v250", "v251"
vCHK, vT4, vT5 = "v252", "v253", "v254"
vTCH, vDUM = "v186", "v187"
AQ = 224

prof_n = [0]


AMP = sys.argv[sys.argv.index("--amp") + 1: sys.argv.index("--amp") + 3] if "--amp" in sys.argv else None


def stamp(name):
    if AMP and name == AMP[0]:
        e("s_memrealtime s[42:43]")
        e("s_waitcnt lgkmcnt(0)")
    if AMP and name == AMP[1]:
        e("s_memrealtime s[66:67]")
        e("s_waitcnt lgkmcnt(0)")
        e("s_sub_u32 s43, s66, s42")
    if AMP and name == "end":
        if AMP[1] == "fix":
            e("s_mov_b32 s66, s42")
            e("s_movk_i32 s43, 1500")
        else:
            e("s_memrealtime s[66:67]")
            e("s_waitcnt lgkmcnt(0)")
        e("s_lshl_b32 s43, s43, 2")
        g.label("L_amp")
        e("s_memrealtime s[64:65]")
        e("s_waitcnt lgkmcnt(0)")
        e("s_sub_u32 s64, s64, s66")
        e("s_cmp_lt_u32 s64, s43")
        e("s_cbranch_scc1 L_amp")
    if not PROF:
        return
    k = prof_n[0]
    prof_n[0] += 1
    PROF_NAMES.append(name)
    e("s_memtime s[42:43]")
    e("s_waitcnt lgkmcnt(0)")
    e(f"v_writelane_b32 v255, s42, {k}")


PROF_NAMES = []


def fstamp(k):
    if PROF:
        e("s_memtime s[42:43]")
        e("s_waitcnt lgkmcnt(0)")
        e(f"v_writelane_b32 v255, s42, {k}")


def pcount(name):
    if not PROF:
        return
    k = prof_n[0]
    prof_n[0] += 1
    PROF_NAMES.append("#" + name)
    e(f"v_writelane_b32 v255, {sSPIN}, {k}")


def mfma32(d, a, b, c):
    e(f"v_mfma_f32_32x32x16_bf16 {d}, {a}, {b}, {c}")


def mfma16(d, a, b, c):
    e(f"v_mfma_f32_16x16x32_bf16 {d}, {a}, {b}, {c}")


def dma(voff, srdn, soff, imm=0, tag=None):
    e(f"buffer_load_dwordx4 {voff}, {srdn}, {soff} offen{f' offset:{imm}' if imm else ''} lds", tag=tag)


def ld4(dst, voff, soff, imm=0, sc1=True, tag=None, srdn=SRD_WS):
    e(f"buffer_load_dwordx4 {dst}, {voff}, {srdn}, {soff} offen{f' offset:{imm}' if imm else ''}{' sc1' if sc1 else ''}", tag=tag)


def st4(src, voff, soff, imm=0, tag=None):
    e(f"buffer_store_dwordx4 {src}, {voff}, {SRD_WS}, {soff} offen{f' offset:{imm}' if imm else ''} sc1", tag=tag)


def wave_max_u32(v, tmp, sdst, rows=4):
    for r in (1, 2, 4, 8):
        e(f"v_max_u32_dpp {v}, {v}, {v} row_ror:{r} row_mask:0xf bank_mask:0xf")
    e(f"v_readlane_b32 {sdst}, {v}, 0")
    for k in range(1, rows):
        e(f"v_readlane_b32 {tmp}, {v}, {16*k}")
        e(f"s_max_u32 {sdst}, {sdst}, {tmp}")


def row_stats_multi(jobs):
    for (xa, X, sa) in jobs:
        for i in range(7):
            e(f"ds_read_b128 {vr(X+4*i,4)}, {xa} offset:{i*1024}")
    for (xa, X, sa) in jobs:
        a0, a1, q0, q1 = (vr(X + 28 + i) for i in range(4))
        for i in range(28):
            a, q = (a0, q0) if i % 2 == 0 else (a1, q1)
            c1, c2 = (a, q) if i >= 2 else ("0", "0")
            e(f"v_dot2_f32_bf16 {a}, {vr(X+i)}, v140, {c1}")
            e(f"v_dot2_f32_bf16 {q}, {vr(X+i)}, {vr(X+i)}, {c2}")
    for (xa, X, sa) in jobs:
        e(f"v_add_f32 v{X+28}, v{X+28}, v{X+29}")
        e(f"v_add_f32 v{X+30}, v{X+30}, v{X+31}")
    for m in ("quad_perm:[1,0,3,2]", "quad_perm:[2,3,0,1]", "row_half_mirror"):
        for (xa, X, sa) in jobs:
            e(f"v_add_f32_dpp v{X+28}, v{X+28}, v{X+28} {m} row_mask:0xf bank_mask:0xf")
            e(f"v_add_f32_dpp v{X+30}, v{X+30}, v{X+30} {m} row_mask:0xf bank_mask:0xf")
    for fn in (lambda X: f"v_mul_f32 v{X+34}, {f2u(1/448):#x}, v{X+28}",
               lambda X: f"v_mul_f32 v{X+30}, {f2u(1/448):#x}, v{X+30}",
               lambda X: f"v_fma_f32 v{X+30}, -v{X+34}, v{X+34}, v{X+30}",
               lambda X: f"v_max_f32 v{X+30}, 0, v{X+30}",
               lambda X: f"v_add_f32 v{X+30}, {f2u(1e-5):#x}, v{X+30}",
               lambda X: f"v_rsq_f32 v{X+35}, v{X+30}"):
        for (xa, X, sa) in jobs:
            e(fn(X))
    e("s_nop 0")
    for (xa, X, sa) in jobs:
        e(f"ds_write_b64 {sa}, {vr(X+34,2)}")


def last_wave_signal_begin(cnt_off, vtmp):
    e(f"v_mov_b32 {vtmp}, 1")
    e("s_mov_b64 exec, 1")
    e(f"ds_add_rtn_u32 {vtmp}, {vZERO}, {vtmp} offset:{L_MISC+cnt_off}")
    e("s_mov_b64 exec, -1")


def spin_guard(lbl_out):
    e(f"s_add_u32 {sSPIN}, {sSPIN}, 1")
    e(f"s_cmp_gt_u32 {sSPIN}, {SPIN_MAX}")
    e(f"s_cbranch_scc1 {lbl_out}")


g.raw(f"{KNAME}:")
e("s_cmp_ge_u32 s2, 256")
e("s_cbranch_scc1 L_end")
e("s_load_dwordx16 s[16:31], s[0:1], 0")
e("s_load_dwordx8 s[32:39], s[0:1], 64")
e("s_load_dwordx2 s[40:41], s[0:1], 96")
e("s_getpc_b64 s[64:65]")
g.label("L_pcref")
e(f"v_lshrrev_b32 {vT0}, 6, v0")
e("v_and_b32 v0, 63, v0")
e(f"s_lshr_b32 s3, s2, 3")
e(f"v_lshl_add_u32 {vT1}, s3, 2, {vT0}")
e(f"v_min_u32 {vT2}, 2, {vLANE}")
e(f"v_mad_u32_u24 {vT1}, {vT1}, 3, {vT2}")
e(f"v_lshlrev_b32 {vT1}, 7, {vT1}")
e(f"v_min_u32 {vT1}, 0x11111, {vT1}")
e(f"global_load_dword v232, {vT1}, s[64:65]")
if PROF:
    e("v_mov_b32 v255, 0")
    e("s_memtime s[42:43]")
e(f"v_readfirstlane_b32 {sW}, {vT0}")
e(f"v_lshlrev_b32 {vL16}, 4, {vLANE}")
e(f"v_mov_b32 {vZERO}, 0")
e(f"s_and_b32 {sJ}, s3, 7")
e(f"s_lshr_b32 s3, s3, 3")
e(f"s_and_b32 {sG}, s2, 7")
e(f"s_lshl2_add_u32 {sG}, {sG}, s3")
e(f"s_lshr_b32 {sQ16}, {sJ}, 1")
e(f"s_and_b32 {sKIND}, {sJ}, 1")
vXO, vUNU, vXE, vXD, vWT, vST, vKVO, vNP = (f"v{i}" for i in range(20, 28))
vXA = [f"v{152+u}" for u in range(4)]
vWA, vWB, vXR0, vXR1, vCSW, vCSR, vQST, vQXW, vF1, vBL, vQNW = (f"v{i}" for i in range(156, 167))
vSX = [f"v{168+i}" for i in range(3)]
vSS = [f"v{171+i}" for i in range(3)]
e(f"v_lshrrev_b32 {vT0}, 3, {vLANE}")
e(f"v_and_b32 {vT1}, 7, {vLANE}")
e(f"v_xor_b32 {vT2}, {vT1}, {vT0}")
e(f"v_mul_u32_u24 {vT0}, 896, {vT0}")
e(f"v_lshl_add_u32 {vXO}, {vT2}, 4, {vT0}")
PROF_NAMES.append("start")
prof_n[0] = 1
if AMP and AMP[0] == "start":
    e("s_memrealtime s[42:43]")


def build_srds():
    e("s_waitcnt lgkmcnt(0)")
    if PROF:
        e("v_writelane_b32 v255, s42, 0")
    fstamp(55)
    srd(SRD_X, 16, 2048 * 896)
    if "--wstop" in sys.argv:
        e(f"s_add_u32 s40, s40, {WS_BYTES - 0x2000000:#x}")
        e("s_addc_u32 s41, s41, 0")
        srd(SRD_WS, 40, 0x2000000)
    else:
        srd(SRD_WS, 40, WS_BYTES)


def x_block_dma(sblk, tag=None):
    e(f"s_mul_i32 m0, {sblk}, {XB}")
    e(f"s_add_u32 m0, m0, {L_X}")
    e(f"s_lshl3_add_u32 {sT[2]}, {sG}, {sblk}")
    e(f"s_mul_i32 {sT[2]}, {sT[2]}, {8*896}")
    for i in range(7):
        dma(vXO, SRD_X, sT[2], 128 * i, tag=tag)
        if i < 6:
            e(f"s_addk_i32 m0, 896")


def x_block_ops(sblk_set, tag):
    def first():
        sblk_set()
        e(f"s_mul_i32 m0, {sBLK}, {XB}")
        e(f"s_add_u32 m0, m0, {L_X}")
        e(f"s_lshl3_add_u32 {sT[5]}, {sG}, {sBLK}")
        e(f"s_mul_i32 {sT[5]}, {sT[5]}, {8*896}")
        dma(vXO, SRD_X, sT[5], 0, tag=tag)

    def nxt(i):
        e(f"s_addk_i32 m0, 896")
        e("s_nop 0")
        dma(vXO, SRD_X, sT[5], 128 * i, tag=tag)
    return [first] + [lambda i=i: nxt(i) for i in range(1, 7)]


def stats_addr(k, sblk):
    e(f"s_mul_i32 {sT[2]}, {sblk}, {XB}")
    e(f"s_add_u32 {sT[2]}, {sT[2]}, {L_X}")
    e(f"v_add_u32 {vSX[k]}, {sT[2]}, {vL16}")
    e(f"s_lshl_b32 {sT[2]}, {sblk}, 6")
    e(f"s_add_u32 {sT[2]}, {sT[2]}, {L_STATS}")
    e(f"v_and_b32 {vSS[k]}, 0x38, {vLANE}")
    e(f"v_add_u32 {vSS[k]}, {sT[2]}, {vSS[k]}")


sRT, sHD = sT[0], sT[1]
sCT, sQH = sHD, sRT


def setup_kv():
    e(f"v_and_b32 {vT0}, 15, {vLANE}")
    e(f"v_lshrrev_b32 {vT1}, 4, {vLANE}")
    e(f"v_and_b32 {vT2}, 7, {vLANE}")
    e(f"v_xor_b32 {vXE}, {vT1}, {vT2}")
    e(f"v_lshlrev_b32 {vXE}, 4, {vXE}")
    e(f"v_lshl_add_u32 {vXE}, {vT2}, 7, {vXE}")
    e(f"v_lshrrev_b32 {vT2}, 3, {vT0}")
    e(f"s_lshl_b32 {sT[3]}, {sQ16}, 1")
    e(f"v_add_u32 {vT2}, {sT[3]}, {vT2}")
    e(f"v_mul_u32_u24 {vT2}, {XB}, {vT2}")
    e(f"v_add_u32 {vXE}, {vXE}, {vT2}")
    e(f"v_add_u32 {vXE}, {L_X}, {vXE}")
    e(f"v_xor_b32 {vXD}, 64, {vXE}")
    e(f"v_lshrrev_b32 {vT2}, 2, {vT0}")
    e(f"v_lshl_add_u32 {vT2}, {vT1}, 3, {vT2}")
    e(f"v_mul_u32_u24 {vT2}, 56, {vT2}")
    e(f"v_and_b32 {vWT}, 3, {vLANE}")
    e(f"v_lshl_add_u32 {vT2}, {vWT}, 3, {vT2}")
    e(f"s_lshl_b32 {sT[3]}, {sW}, 5")
    e(f"s_add_u32 {sT[3]}, {sT[3]}, {L_WKV}")
    e(f"v_add_u32 {vWT}, {sT[3]}, {vT2}")
    e(f"v_lshlrev_b32 {vT2}, 3, {vT0}")
    e(f"v_lshlrev_b32 {vST}, 5, {vT1}")
    e(f"s_cmp_eq_u32 {sKIND}, 0")
    e(f"s_cselect_b64 vcc, -1, 0")
    e(f"v_cndmask_b32 {vST}, {vST}, {vT2}, vcc")
    e(f"s_lshl_b32 {sT[3]}, {sQ16}, 7")
    e(f"s_add_u32 {sT[3]}, {sT[3]}, {L_STATS}")
    e(f"v_add_u32 {vST}, {sT[3]}, {vST}")
    e(f"v_bfe_u32 {vT2}, {vLANE}, 4, 1")
    e(f"v_lshl_add_u32 {vT0}, {vT2}, 5, {vT0}")
    e(f"v_lshlrev_b32 {vT0}, 4, {vT0}")
    e(f"v_lshrrev_b32 {vT1}, 5, {vLANE}")
    e(f"v_lshl_add_u32 {vKVO}, {vT1}, 3, {vT0}")
    e(f"s_and_b32 {sT[3]}, {sQ16}, 1")
    e(f"s_cmp_eq_u32 {sKIND}, 0")
    e(f"s_cselect_b32 {sT[4]}, {sW}, {sT[3]}")
    e(f"s_cselect_b32 {sT[5]}, {sT[3]}, {sW}")
    e(f"s_lshl_b32 {sT[4]}, {sT[4]}, 10")
    e(f"s_lshl_b32 {sT[5]}, {sT[5]}, 8")
    e(f"s_add_u32 {sT[4]}, {sT[4]}, {sT[5]}")
    e(f"s_lshl_b32 {sT[5]}, {sKIND}, 11")
    e(f"s_add_u32 {sT[4]}, {sT[4]}, {sT[5]}")
    e(f"s_lshl_b32 {sT[3]}, {sG}, 1")
    e(f"s_lshr_b32 {sT[5]}, {sQ16}, 1")
    e(f"s_add_u32 {sT[3]}, {sT[3]}, {sT[5]}")
    e(f"s_lshl_b32 {sT[3]}, {sT[3]}, 12")
    e(f"s_add_u32 {sT[4]}, {sT[4]}, {sT[3]}")
    e(f"s_add_u32 {sRET}, {sT[4]}, {WS_KV}")


def setup_q():
    e(f"v_and_b32 {vT0}, 7, {vLANE}")
    e(f"v_lshrrev_b32 {vT1}, 5, {vLANE}")
    e(f"v_xor_b32 {vT2}, {vT0}, {vT1}")
    e(f"s_lshl_b32 {sT[2]}, {sRT}, 2")
    e(f"v_xor_b32 {vT2}, {sT[2]}, {vT2}")
    e(f"v_lshlrev_b32 {vT2}, 4, {vT2}")
    e(f"v_lshl_add_u32 {vT2}, {vT0}, 7, {vT2}")
    e(f"v_bfe_u32 {vT0}, {vLANE}, 3, 2")
    e(f"v_add_u32 {vT0}, {sT[2]}, {vT0}")
    e(f"v_mul_u32_u24 {vT0}, {XB}, {vT0}")
    e(f"v_add_u32 {vXA[0]}, {vT0}, {vT2}")
    for u in range(1, 4):
        e(f"v_xor_b32 {vXA[u]}, {32*u}, {vXA[0]}")
    e(f"v_bfe_u32 {vT0}, {vLANE}, 2, 2")
    e(f"v_lshl_add_u32 {vT1}, {vT1}, 3, {vT0}")
    e(f"v_lshlrev_b32 {vT1}, 7, {vT1}")
    e(f"v_lshrrev_b32 {vT0}, 1, {vT0}")
    e(f"v_lshlrev_b32 {vT0}, 6, {vT0}")
    e(f"v_and_b32 {vT2}, 3, {vLANE}")
    e(f"v_lshl_add_u32 {vT0}, {vT2}, 3, {vT0}")
    e(f"v_bfe_u32 {vT2}, {vLANE}, 4, 1")
    e(f"v_lshl_add_u32 {vT0}, {vT2}, 5, {vT0}")
    e(f"s_mul_i32 {sT[2]}, {sHD}, 56")
    e(f"v_add_u32 {vT0}, {sT[2]}, {vT0}")
    e(f"v_and_b32 {vT0}, 127, {vT0}")
    e(f"v_add_u32 {vT0}, {vT0}, {vT1}")
    e(f"s_lshl_b32 {sT[2]}, {sRT}, 12")
    e(f"s_add_u32 {sT[3]}, {sT[2]}, {L_WQ}")
    e(f"v_add_u32 {vWA}, {sT[3]}, {vT0}")
    e(f"s_sub_u32 {sT[3]}, {L_WQ+4096}, {sT[2]}")
    e(f"v_add_u32 {vWB}, {sT[3]}, {vT0}")
    e(f"s_lshl_b32 {sT[2]}, {sJ}, 7")
    e(f"s_lshl_b32 {sT[3]}, {sCT}, 6")
    e(f"s_add_u32 {sT[2]}, {sT[2]}, {sT[3]}")
    e(f"s_lshl_b32 {sT[3]}, {sQH}, 5")
    e(f"s_add_u32 {sC}, {sT[2]}, {sT[3]}")
    e(f"v_lshrrev_b32 {vT1}, 5, {vLANE}")
    e(f"v_lshlrev_b32 {vT1}, 3, {vT1}")
    e(f"v_and_b32 {vT0}, 7, {vLANE}")
    e(f"v_lshl_add_u32 {vT1}, {vT0}, 7, {vT1}")
    e(f"v_bfe_u32 {vT2}, {vLANE}, 3, 2")
    e(f"v_mul_u32_u24 {vT2}, {XB}, {vT2}")
    e(f"v_add_u32 {vT1}, {vT1}, {vT2}")
    for pc, dst in enumerate((vXR0, vXR1)):
        e(f"s_lshr_b32 {sT[2]}, {sC}, 4")
        if pc:
            e(f"s_add_u32 {sT[2]}, {sT[2]}, 1")
        e(f"s_and_b32 {sT[3]}, {sT[2]}, 7")
        e(f"s_lshr_b32 {sT[2]}, {sT[2]}, 3")
        e(f"s_lshl_b32 {sT[2]}, {sT[2]}, 10")
        e(f"v_xor_b32 {vT2}, {sT[3]}, {vT0}")
        e(f"v_lshl_add_u32 {vT2}, {vT2}, 4, {vT1}")
        e(f"v_add_u32 {dst}, {sT[2]}, {vT2}")
    e(f"s_lshl_b32 {sT[2]}, {sW}, 7")
    e(f"v_and_b32 {vT0}, 32, {vLANE}")
    e(f"v_lshl_add_u32 {vCSW}, {vT0}, 1, {sT[2]}")
    e(f"v_xor_b32 {vCSR}, 0x100, {vCSW}")
    e(f"v_and_b32 {vT0}, 31, {vLANE}")
    e(f"s_lshl_b32 {sT[2]}, {sRT}, 8")
    e(f"s_add_u32 {sT[2]}, {sT[2]}, {L_STATS}")
    e(f"v_lshl_add_u32 {vQST}, {vT0}, 3, {sT[2]}")
    e(f"s_lshl_b32 {sT[2]}, {sW}, 11")
    e(f"v_add_u32 {vQXW}, {sT[2]}, {vL16}")
    e(f"v_lshlrev_b32 {vF1}, 7, {vLANE}")
    e(f"v_lshlrev_b32 {vBL}, 2, {vLANE}")
    e(f"s_lshl_b32 {sT[2]}, {sW}, 8")
    e(f"v_add_u32 {vQNW}, {sT[2]}, {vBL}")
    for i in range(4):
        e(f"v_mov_b32 v{140+i}, 0x3f803f80")
    e("s_mov_b32 s98, 0")
    e("s_mov_b32 s99, -1")
    e(f"s_lshl_b32 {sKV}, {sW}, 16")
    e(f"s_add_u32 {sKV}, {sKV}, {WS_KV}")
    e(f"s_lshl_b32 {sKO[0]}, s2, 9")
    e(f"s_and_b32 {sKO[0]}, {sKO[0]}, 0xf000")


def setup_bases():
    e(f"s_lshl_b32 {sT[2]}, {sG}, 16")
    e(f"s_add_u32 {sT[3]}, {sT[2]}, {WS_OF}")
    e(f"s_lshl_b32 {sOFW}, {sRT}, 4")
    e(f"s_lshl1_add_u32 {sT[4]}, {sJ}, {sHD}")
    e(f"s_add_u32 {sOFW}, {sOFW}, {sT[4]}")
    e(f"s_lshl_b32 {sOFW}, {sOFW}, 11")
    e(f"s_add_u32 {sOFW}, {sOFW}, {sT[3]}")
    e(f"s_lshl_b32 {sOFR}, {sW}, 13")
    e(f"s_add_u32 {sOFR}, {sOFR}, {sT[3]}")
    e(f"s_add_u32 {sT[3]}, {sT[2]}, {WS_HF}")
    e(f"s_lshl1_add_u32 {sT[4]}, {sCT}, {sQH}")
    e(f"s_lshl2_add_u32 {sT[4]}, {sJ}, {sT[4]}")
    e(f"s_lshl_b32 {sT[4]}, {sT[4]}, 10")
    e(f"s_add_u32 {sHFW}, {sT[4]}, {sT[3]}")
    e(f"s_lshl1_add_u32 {sT[4]}, {sCT}, {sQH}")
    e(f"s_mul_i32 {sT[4]}, {sT[4]}, {14*1024}")
    e(f"s_add_u32 {sHFR}, {sT[4]}, {sT[3]}")
    e(f"s_mul_i32 {sT[3]}, {sG}, {224*1024}")
    e(f"s_add_u32 {sT[3]}, {sT[3]}, {WS_HID}")
    e(f"s_lshl2_add_u32 {sT[4]}, {sJ}, {sW}")
    e(f"s_lshl_b32 {sT[4]}, {sT[4]}, 12")
    e(f"s_add_u32 {sHIDW}, {sT[4]}, {sT[3]}")
    e(f"s_mul_i32 {sHIDR}, {sW}, {28*1024}")
    e(f"s_add_u32 {sHIDR}, {sHIDR}, {sT[3]}")
    e(f"s_lshl_b32 {sT[3]}, {sJ}, 7")
    e(f"s_mul_i32 {sWOB}, {sW}, {112*896}")
    e(f"s_add_u32 {sWOB}, {sWOB}, {sT[3]}")
    e(f"s_mul_i32 {sW2B}, {sW}, {448*896}")
    e(f"s_add_u32 {sW2B}, {sW2B}, {sT[3]}")
    e(f"s_lshl2_add_u32 {sW1B}, {sJ}, {sW}")
    e(f"s_lshl_b32 {sW1B}, {sW1B}, 7")
    e(f"s_mul_i32 {sLB}, {sW}, {AREA}")
    e(f"s_add_u32 {sLB}, {sLB}, {L_X}")
    srd(SRD_WO, 24, 448 * 896)
    srd(SRD_W1, 28, 448 * 3584)
    srd(SRD_W2, 32, 1792 * 896)
    srd(SRD_OUT, 36, 2048 * 896)
    e(f"s_cmp_eq_u32 {sJ}, 7")
    e(f"s_cselect_b32 {sT[4]}, {OOB:#x}, 0")
    e(f"v_add_u32 {vHL16}, {sT[4]}, {vL16}")
    e(f"v_lshrrev_b32 {vT0}, 3, {vLANE}")
    e(f"v_bfe_u32 {vT1}, {vLANE}, 4, 1")
    e(f"v_lshl_add_u32 {vT1}, {vT1}, 2, {vLANE}")
    e(f"v_and_b32 {vT1}, 7, {vT1}")
    e(f"v_lshl_add_u32 {vT1}, {vT1}, 4, {sT[4]}")
    e(f"v_mul_u32_u24 {vT0}, 896, {vT0}")
    e(f"v_add_u32 {vD896}, {vT0}, {vT1}")
    e(f"v_lshl_add_u32 {vD3584}, {vT0}, 2, {vT1}")
    e(f"v_add_u32 {vD896b}, {8*896-1024}, {vD896}")
    e(f"v_add_u32 {vD3584b}, {8*3584-1024}, {vD3584}")
    e(f"v_bfe_u32 {vT0}, {vLANE}, 2, 2")
    e(f"v_lshrrev_b32 {vT1}, 5, {vLANE}")
    e(f"v_lshl_add_u32 {vT1}, {vT1}, 2, {vT0}")
    e(f"v_lshl_add_u32 {vT1}, {vT1}, 7, {sLB}")
    e(f"v_lshrrev_b32 {vT0}, 1, {vT0}")
    e(f"v_lshl_add_u32 {vT1}, {vT0}, 6, {vT1}")
    e(f"v_and_b32 {vT0}, 3, {vLANE}")
    e(f"v_lshl_add_u32 {vT1}, {vT0}, 3, {vT1}")
    e(f"v_bfe_u32 {vT0}, {vLANE}, 4, 1")
    e(f"v_lshl_add_u32 {vTR1}, {vT0}, 5, {vT1}")
    e(f"v_xor_b32 {vTR1b}, 64, {vTR1}")
    e(f"s_lshl1_add_u32 {sT[4]}, {sCT}, {sQH}")
    e(f"s_lshl_b32 {sT[4]}, {sT[4]}, 5")
    e(f"v_xor_b32 {vTR2}, {sT[4]}, {vTR1}")
    e(f"v_xor_b32 {vTR2b}, 64, {vTR2}")
    e(f"v_min_u32 {vTCH}, 24, {vLANE}")
    e(f"v_lshlrev_b32 {vTCH}, 7, {vTCH}")
    for i in range(4):
        e(f"v_mov_b32 v{SENT+i}, -1")
    e(f"s_lshr_b32 {sTCH}, s2, 3")
    e(f"s_lshl2_add_u32 {sTCH}, {sTCH}, {sW}")
    e(f"s_mov_b32 {sT[2]}, {sJ}")
    for i in range(7):
        e(f"s_cmp_eq_u32 {sT[2]}, 7")
        e(f"s_cselect_b32 {sT[2]}, 0, {sT[2]}")
        e(f"s_lshl_b32 {sROT7[i]}, {sT[2]}, 12")
        e(f"s_add_u32 {sT[2]}, {sT[2]}, 1")
    for i in range(4):
        e(f"s_add_u32 {sT[2]}, {sJ}, {i}")
        e(f"s_and_b32 {sT[2]}, {sT[2]}, 3")
        e(f"s_lshl_b32 {sRO[i]}, {sT[2]}, 11")
        e(f"s_mul_i32 {sRL[i]}, {sT[2]}, {28*128}")


e(f"s_lshr_b32 {sRT}, {sW}, 1")
e(f"s_and_b32 {sHD}, {sW}, 1")
sBLK = sT[15]
e(f"s_lshl1_add_u32 {sBLK}, {sQ16}, {sHD}")
build_srds()
e(f"s_cmp_lt_u32 {sW}, 2")
e("s_cbranch_scc1 L_p1_A")
st0 = g.state()
x_block_dma(sBLK, tag="crit")
e("s_branch L_p1_B")
stB0 = g.state()
g.set_state(st0)
g.label("L_p1_A")
srd(SRD_DBG, 38, 256)
e(f"s_or_b32 {sT[2]}, s2, {sW}")
e(f"s_cmp_lg_u32 {sT[2]}, 0")
e("s_cbranch_scc1 L_p1_nst")
stA = g.state()
e("s_memrealtime s[66:67]")
e("s_waitcnt lgkmcnt(0)")
e("s_or_b32 s66, s66, 1")
e(f"v_mov_b32 {vNP}, s66")
e("s_mov_b64 exec, 1")
e(f"buffer_store_dword {vNP}, {vZERO}, {SRD_DBG}, 0 offen sc1")
e("s_mov_b64 exec, -1")
g.join([stA, g.state()])
g.label("L_p1_nst")
e(f"s_cmp_eq_u32 {sKIND}, 0")
e("s_cselect_b32 s48, s20, s22")
e("s_cselect_b32 s49, s21, s23")
e("s_and_b32 s49, s49, 0xffff")
e(f"s_movk_i32 s50, {448*56}")
e("s_mov_b32 s51, 0x20000")
e(f"s_lshr_b32 {sT[4]}, s2, 4")
e(f"s_mul_i32 {sT[3]}, {sT[4]}, 86")
e(f"s_lshr_b32 {sT[3]}, {sT[3]}, 8")
e(f"s_mul_i32 {sT[3]}, {sT[3]}, 3")
e(f"s_sub_u32 {sT[4]}, {sT[4]}, {sT[3]}")
e(f"s_lshl_b32 {sT[4]}, {sT[4]}, 12")
e(f"s_mul_i32 {sT[5]}, {sW}, 12288")
for grp in range(3):
    e(f"s_add_u32 {sT[2]}, {sT[4]}, {sT[5]}")
    e(f"s_add_u32 m0, {sT[2]}, {L_WKV}")
    if grp < 2:
        e(f"s_addk_i32 {sT[4]}, 4096")
        e(f"s_cmpk_eq_u32 {sT[4]}, 12288")
        e(f"s_cselect_b32 {sT[4]}, 0, {sT[4]}")
    else:
        e("s_nop 0")
    for i in range(4):
        dma(vL16, SRD_WKV, sT[2], i * 1024)
    if grp == 0:
        fstamp(56)
e(f"s_add_u32 {sT[2]}, {sT[5]}, 12288")
e(f"s_add_u32 m0, {sT[2]}, {L_WKV}")
e("s_nop 0")
dma(vL16, SRD_WKV, sT[2], tag="crit")
srd(SRD_WQ, 18, 448 * 896)
e(f"s_lshr_b32 {sT[3]}, s2, 3")
e(f"s_lshl1_add_u32 {sT[3]}, {sT[3]}, {sW}")
e(f"s_mul_i32 {sT[3]}, {sT[3]}, {49*128}")
e(f"v_min_u32 {vT0}, 48, {vLANE}")
e(f"v_lshlrev_b32 {vT0}, 7, {vT0}")
e(f"buffer_load_dword v233, {vT0}, {SRD_WQ}, {sT[3]} offen")
fstamp(50)
setup_kv()
e(f"s_lshl1_add_u32 {sBLK}, {sW}, {sBLK}")
for m in range(3):
    e(f"s_add_u32 {sT[3]}, {sBLK}, {2+m}")
    e(f"s_and_b32 {sT[3]}, {sT[3]}, 7")
    stats_addr(m, sT[3])
e(f"s_add_u32 {sBLK}, {sBLK}, 1")
e(f"s_mov_b32 s67, {sRET}")
setup_q()
e(f"s_and_b32 {sFLG1}, s2, 63")
e(f"s_lshl_b32 {sFLG1}, {sFLG1}, 7")
e(f"s_lshr_b32 {sT[2]}, s2, 6")
e(f"s_lshl3_add_u32 {sFLG1}, {sT[2]}, {sFLG1}")
for i in range(4):
    e(f"v_mov_b32 v{28+i}, 0")
e(f"ds_write_b128 {vZERO}, v[28:31] offset:{L_MISC}")
e(f"ds_write_b128 {vZERO}, v[28:31] offset:{L_MISC+16}")
e(f"s_mov_b32 {sSPIN}, 0")
e(f"buffer_load_dword {vNP}, {vZERO}, {SRD_DBG}, 0 offen sc1")
fstamp(51)
g.wait_tag("crit")
fstamp(52)
g.barrier()
stamp("B1")
XF, WF = 28, 84
ACC16, CS16, ONES = vr(144, 4), vr(148, 4), vr(140, 4)


def kv_reads(t):
    e(f"ds_read_b128 {vr(XF+4*t,4)}, {vXE if t%2==0 else vXD} offset:{(t>>1)*1024}")
    for h in range(2):
        e(f"ds_read_b64_tr_b16 {vr(WF+4*t+2*h,2)}, {vWT} offset:{t*1792+h*224}")


def blk_next():
    e(f"s_add_u32 {sBLK}, {sBLK}, 1")
    e(f"s_and_b32 {sBLK}, {sBLK}, 7")


def xrest_ops():
    return sum([x_block_ops(blk_next, "xrest") for m in range(3)], [])


for t in range(5):
    kv_reads(t)
e(f"s_cmp_lg_u32 {sKIND}, 0")
e("s_cbranch_scc1 L_p1_vk")
stK = g.state()
xo = xrest_ops()
for t in range(14):
    if t + 5 < 14:
        kv_reads(t + 5)
    mfma16(ACC16, vr(WF + 4 * t, 4), vr(XF + 4 * t, 4), ACC16 if t else "0")
    mfma16(CS16, vr(WF + 4 * t, 4), ONES, CS16 if t else "0")
    for op in xo[(3 * t + 1) // 2:(3 * t + 4) // 2]:
        op()
e(f"s_lshl_b32 {sT[3]}, {sW}, 16")
e(f"s_mul_i32 {sT[3]}, {sT[3]}, 0xffff")
e(f"s_mov_b32 vcc_lo, 0")
e(f"s_mov_b32 vcc_hi, {sT[3]}")
g.barrier()
e(f"ds_read_b64 v[28:29], {vST}")
for r in range(4):
    e(f"v_fma_f32 v{144+r}, -v28, v{148+r}, v{144+r}")
for r in range(4):
    e(f"v_mul_f32 v{144+r}, v29, v{144+r}")
for r in range(4):
    e(f"v_cndmask_b32 v{144+r}, v{144+r}, {vZERO}, vcc")
e("v_cvt_pk_bf16_f32 v148, v144, v145")
e("v_cvt_pk_bf16_f32 v149, v146, v147")
e(f"buffer_store_dwordx2 v[148:149], {vKVO}, {SRD_WS}, s67 offen sc1", tag="kvst")
e("v_max3_f32 v150, abs(v144), abs(v145), abs(v146)")
e("v_max_f32 v150, v150, abs(v147)")
e("s_branch L_p1_kvst")
stK2 = g.state()
g.set_state(stK)
g.label("L_p1_vk")
xo = xrest_ops()
for t in range(14):
    if t + 5 < 14:
        kv_reads(t + 5)
    mfma16(ACC16, vr(XF + 4 * t, 4), vr(WF + 4 * t, 4), ACC16 if t else "0")
    mfma16(CS16, ONES, vr(WF + 4 * t, 4), CS16 if t else "0")
    for op in xo[(3 * t + 1) // 2:(3 * t + 4) // 2]:
        op()
e(f"v_and_b32 {vT0}, 15, {vLANE}")
e(f"s_lshl_b32 {sT[3]}, {sW}, 4")
e(f"v_add_u32 {vT0}, {sT[3]}, {vT0}")
e(f"v_cmp_lt_u32 vcc, 27, {vT0}")
e(f"v_cmp_eq_u32 s[72:73], 28, {vT0}")
g.barrier()
e(f"ds_read_b128 v[32:35], {vST}")
e(f"ds_read_b128 v[36:39], {vST} offset:16")
for r in range(4):
    e(f"v_fma_f32 v{144+r}, -v{32+2*r}, v{148+r}, v{144+r}")
for r in range(4):
    e(f"v_mul_f32 v{144+r}, v{33+2*r}, v{144+r}")
e("v_cvt_pk_bf16_f32 v148, v144, v145")
e("v_cvt_pk_bf16_f32 v149, v146, v147")
e(f"v_cndmask_b32 v148, v148, {vZERO}, vcc")
e(f"v_cndmask_b32 v149, v149, {vZERO}, vcc")
e(f"v_cndmask_b32 v148, v148, v140, s[72:73]")
e(f"v_cndmask_b32 v149, v149, v140, s[72:73]")
e(f"buffer_store_dwordx2 v[148:149], {vKVO}, {SRD_WS}, s67 offen sc1", tag="kvst")
e("v_mov_b32 v150, 0")
g.join([stK2, g.state()])
g.label("L_p1_kvst")
stamp("kvstore")
wave_max_u32("v150", sT[5], sT[4])
e(f"v_mov_b32 v150, {sT[4]}")
e(f"ds_max_u32 {vZERO}, v150 offset:{L_MISC+16}")
g.label("L_p1_nchk")
e(f"v_readfirstlane_b32 {sNONCE}, {vNP}")
e(f"s_cmp_lg_u32 {sNONCE}, 0")
e("s_cbranch_scc1 L_p1_ngot")
stA = g.state()
spin_guard("L_p1_ngot")
e(f"buffer_load_dword {vNP}, {vZERO}, {SRD_DBG}, 0 offen sc1")
e("s_waitcnt vmcnt(0)")
e("s_branch L_p1_nchk")
g.set_state(stA)
g.label("L_p1_ngot")
if PROF:
    e(f"v_writelane_b32 v255, {sSPIN}, 62")
e(f"ds_write_b32 {vZERO}, {vNP} offset:{L_MISC}")
g.wait_tag("xrest")
row_stats_multi([(vSX[0], 28, vSS[0])])
fstamp(53)
g.wait_tag("kvst")
fstamp(54)
last_wave_signal_begin(4, "v150")
e(f"ds_read_b32 v149, {vZERO} offset:{L_MISC+16}")
e(f"v_mov_b32 v148, {sNONCE}")
e(f"v_readfirstlane_b32 {sT[2]}, v150")
e(f"s_cmp_lg_u32 {sT[2]}, 1")
e("s_cbranch_scc1 L_p1_nofl")
stB = g.state()
e("s_mov_b64 exec, 1")
e(f"buffer_store_dwordx2 v[148:149], {vZERO}, {SRD_WS}, {sFLG1} offen sc1")
e("s_mov_b64 exec, -1")
g.join([stB, g.state()])
g.label("L_p1_nofl")
row_stats_multi([(vSX[1], 28, vSS[1]), (vSX[2], 64, vSS[2])])
e("s_branch L_p1_b3")
stW01 = g.state()

g.set_state(stB0)
g.label("L_p1_B")
fstamp(50)
stats_addr(0, sBLK)
srd(SRD_WQ, 18, 448 * 896)
srd(SRD_B, 30, 1792 * 2)
srd(SRD_DBG, 34, 448 * 2)
e(f"s_lshl_b32 {sT[2]}, {sJ}, 9")
e(f"s_lshl_b32 {sT[3]}, {sHD}, 8")
e(f"s_add_u32 {sT[2]}, {sT[2]}, {sT[3]}")
e(f"v_lshlrev_b32 {vT0}, 1, {vLANE}")
e(f"v_add_u32 {vT1}, {sT[2]}, {vT0}")
e(f"buffer_load_ushort v240, {vT1}, {SRD_B}, 0 offen")
e(f"buffer_load_ushort v241, {vT1}, {SRD_B}, 0 offen offset:128")
e(f"s_lshl_b32 {sT[2]}, {sJ}, 7")
e(f"v_add_u32 {vT1}, {sT[2]}, {vT0}")
e(f"buffer_load_ushort v242, {vT1}, {SRD_DBG}, 0 offen")
e(f"v_lshrrev_b32 {vT0}, 3, {vLANE}")
e(f"v_bfe_u32 {vT1}, {vLANE}, 4, 1")
e(f"v_lshl_add_u32 {vT1}, {vT1}, 2, {vLANE}")
e(f"v_and_b32 {vT1}, 7, {vT1}")
e(f"v_mul_u32_u24 {vT0}, 896, {vT0}")
e(f"v_lshl_add_u32 {vD896}, {vT1}, 4, {vT0}")
setup_q()
fstamp(51)
g.wait_tag("crit")
fstamp(52)
g.barrier()
prof_n[0] = 1
del PROF_NAMES[1:]
stamp("B1")
row_stats_multi([(vSX[0], 28, vSS[0])])
g.barrier()
stamp("kvstore")
e(f"s_mul_i32 {sT[4]}, {sJ}, 112")
e(f"s_mul_i32 {sT[3]}, {sHD}, {28*8*896}")
e(f"s_add_u32 {sT[4]}, {sT[4]}, {sT[3]}")
e(f"s_mul_i32 {sT[5]}, {sHD}, {28*1024}")
e(f"s_add_u32 {sT[5]}, {sT[5]}, {L_WQ}")
e(f"s_mov_b32 m0, {sT[5]}")
e("s_nop 0")
for b in range(28):
    dma(vD896, SRD_WQ, sT[4], tag="wq")
    if b < 27:
        e(f"s_addk_i32 m0, 1024")
        e(f"s_addk_i32 {sT[4]}, {8*896}")
fstamp(53)
e(f"s_lshl_b32 {sT[2]}, {sHD}, 9")
e(f"v_add_u32 {vT1}, {sT[2]}, {vBL}")
for i in range(3):
    e(f"v_lshlrev_b32 v{240+i}, 16, v{240+i}")
e(f"ds_write_b32 {vT1}, v240 offset:{L_B1}")
e(f"ds_write_b32 {vT1}, v241 offset:{L_B1+256}")
e(f"ds_write_b32 {vBL}, v242 offset:{L_B2}")
g.wait_tag("wq")
fstamp(54)
g.join([stW01, g.state()])
g.label("L_p1_b3")
stamp("preB3")
g.barrier()
stamp("B3")
if PROF:
    e("s_memrealtime s[42:43]")
    e("s_waitcnt lgkmcnt(0)")
    e("v_writelane_b32 v255, s42, 60")
    stamp("B3rt")
QACC, QCS, QX_, QW_ = 104, 120, 32, 64


def signal_end(vtmp, which, uniq):
    e(f"v_readfirstlane_b32 {sT[2]}, {vtmp}")
    e(f"s_cmp_lg_u32 {sT[2]}, 3")
    e(f"s_cbranch_scc1 L_sig_{uniq}")
    st = g.state()
    e(f"s_lshl_b32 {sT[2]}, {sG}, 7")
    e(f"s_lshl2_add_u32 {sT[2]}, {sJ}, {sT[2]}")
    e(f"s_add_u32 {sT[2]}, {sT[2]}, {WS_FLAG3}")
    e(f"v_mov_b32 {vtmp}, {sNONCE}")
    e("s_mov_b64 exec, 1")
    e(f"buffer_store_dword {vtmp}, {vZERO}, {SRD_WS}, {sT[2]} offen sc1")
    e("s_mov_b64 exec, -1")
    g.join([st, g.state()])
    g.label(f"L_sig_{uniq}")


order = [t for t in range(28) if (t & 3) < 2] + [t for t in range(28) if (t & 3) >= 2]


def q_loads_n(n):
    t = order[n]
    seg, u = t >> 2, t & 3
    e(f"ds_read_b128 {vr(QX_+4*(n%8),4)}, {vXA[u]} offset:{L_X+seg*1024}")
    for h in range(2):
        e(f"ds_read_b64_tr_b16 {vr(QW_+4*(n%8)+2*h,2)}, {vWA if u<2 else vWB} offset:{seg*8192+(u&1)*2048+h*512}")


def poll1_issue():
    ld4("v[96:99]", vF1, "0")
    ld4("v[100:103]", vF1, "0", 16)


for n in range(4):
    q_loads_n(n)
CSP = 144
csp = [144 + i for i in range(8)] + [168 + i for i in range(8)]
QSCALE = 28 ** -0.5 * 1.4426950408889634
for n in range(28):
    if n + 4 < 28:
        q_loads_n(n + 4)
    mfma32(vr(QACC, 16), vr(QW_ + 4 * (n % 8), 4), vr(QX_ + 4 * (n % 8), 4), vr(QACC, 16) if n else "0")
    if n < 14:
        mfma32(vr(QCS, 16), vr(QW_ + 4 * (n % 8), 4), ONES, vr(QCS, 16) if n else "0")
    if n == 2:
        for rt in range(2):
            e(f"ds_read_b64 {vr(XRES+4*rt,2)}, {vXR0} offset:{L_X+rt*4*XB}")
            e(f"ds_read_b64 {vr(XRES+4*rt+2,2)}, {vXR1} offset:{L_X+rt*4*XB}")
        e(f"ds_read_b64 v[136:137], {vQST}")
    if n == 9:
        e(f"s_cmp_lg_u32 {sW}, 0")
        e("s_cbranch_scc1 L_p1_np")
        stA = g.state()
        poll1_issue()
        g.join([stA, g.state()])
        g.label("L_p1_np")
    if n == 24:
        e(f"ds_read_b32 {vT5}, {vZERO} offset:{L_MISC}")
    if n == 27:
        e(f"v_readfirstlane_b32 {sNONCE}, {vT5}")
    if n == 6:
        e(f"v_mul_f32 v137, {f2u(QSCALE):#x}, v137")
        e(f"v_mul_f32 v136, v136, v137")
    if 16 <= n < 20:
        e("s_mov_b32 exec_lo, 1")
        e("s_mov_b32 exec_hi, 1")
        e(f"ds_write_b128 {vCSW}, {vr(QCS+4*(n-16),4)} offset:{L_CSX+(n-16)*16}")
        e("s_mov_b64 exec, -1")
    if n == 20:
        g.barrier()
        for i in range(4):
            e(f"ds_read_b128 {vr(csp[4*i],4)}, {vCSR} offset:{L_CSX+i*16}")
    if 23 <= n < 27:
        for r in range(4 * (n - 23), 4 * (n - 23) + 4):
            e(f"v_add_f32 v{QCS+r}, v{QCS+r}, v{csp[r]}")
            e(f"v_mul_f32 v{QCS+r}, v136, v{QCS+r}")
stamp("qgemm")
for r in range(16):
    e(f"v_fma_f32 v{QACC+r}, v{QACC+r}, v137, -v{QCS+r}")
for r in range(12, 16):
    e(f"v_cndmask_b32 v{QACC+r}, v{QACC+r}, {vZERO}, {sMASKH}")
for r in range(8):
    e(f"v_cvt_pk_bf16_f32 v{48+r}, v{QACC+2*r}, v{QACC+2*r+1}")
e(f"ds_write_b128 {vQXW}, v[48:51] offset:{L_QX}")
e(f"ds_write_b128 {vQXW}, v[52:55] offset:{L_QX+1024}")
e(f"v_add_f32 v58, abs(v{QACC}), abs(v{QACC+1})")
e(f"v_add_f32 v59, abs(v{QACC+2}), abs(v{QACC+3})")
for r in range(4, 16, 2):
    e(f"v_add_f32 v58, v58, abs(v{QACC+r})")
    e(f"v_add_f32 v59, v59, abs(v{QACC+r+1})")
e("v_add_f32 v58, v58, v59")
e(f"ds_write_b32 {vQNW}, v58 offset:{L_QN}")
e(f"s_cmp_lg_u32 {sW}, 0")
e("s_cbranch_scc1 L_p1_b5")
stA = g.state()
e(f"s_mov_b32 {sSPIN}, 0")
g.label("L_f1_chk")
g.wait_regs("v[96:103]")
e(f"v_xor_b32 v96, {sNONCE}, v96")
e(f"v_xor_b32 v98, {sNONCE}, v98")
e(f"v_xor_b32 v100, {sNONCE}, v100")
e(f"v_xor_b32 v102, {sNONCE}, v102")
e("v_or3_b32 v96, v96, v98, v100")
e("v_or_b32 v96, v96, v102")
e("v_cmp_ne_u32 vcc, 0, v96")
e("s_cbranch_vccz L_f1_ok")
spin_guard("L_f1_ok")
poll1_issue()
e("s_waitcnt vmcnt(0)")
e("s_branch L_f1_chk")
g.label("L_f1_ok")
pcount("poll1")
e("v_max3_u32 v97, v97, v99, v101")
e("v_max_u32 v97, v97, v103")
e(f"ds_write_b32 {vBL}, v97 offset:{L_SQ}")
g.join([stA, g.state()])
g.label("L_p1_b5")
stamp("preB5")
g.barrier()
stamp("B5")


NB, AKV = int(opt("--nb", 6)), 112


def kv_load(kt):
    b = AKV + 16 * (kt % NB)
    e(f"s_add_u32 {sT[15]}, {sKV}, {sKO[0]}")
    for i in range(4):
        ld4(ar(b + 4 * i, 4), vL16, sT[15], 1024 * i)
    e(f"s_addk_i32 {sKO[0]}, 4096")
    e(f"s_and_b32 {sKO[0]}, {sKO[0]}, 0xffff")


for kt in range(2):
    kv_load(kt)
for s in range(4):
    e(f"s_add_u32 {sT[2]}, {sW}, {s+1}")
    e(f"s_and_b32 {sT[2]}, {sT[2]}, 3")
    e(f"s_lshl_b32 {sT[2]}, {sT[2]}, 11")
    e(f"v_add_u32 {vT0}, {sT[2]}, {vL16}")
    e(f"ds_read_b128 {ar(AQ+8*s,4)}, {vT0} offset:{L_QX}")
    e(f"ds_read_b128 {ar(AQ+8*s+4,4)}, {vT0} offset:{L_QX+1024}")
e(f"v_and_b32 {vT0}, 31, {vLANE}")
e(f"v_lshlrev_b32 {vT0}, 2, {vT0}")
e(f"v_add_u32 {vT0}, {L_QN}, {vT0}")
for k in range(4):
    e(f"ds_read2_b32 {vr(24+2*k,2)}, {vT0} offset0:{64*k} offset1:{64*k+32}")
e(f"v_lshlrev_b32 {vT1}, 2, {vLANE}")
e(f"ds_read_b32 v32, {vT1} offset:{L_SQ}")
for k in range(4):
    e(f"v_add_f32 v{24+2*k}, v{24+2*k}, v{25+2*k}")
e("v_max3_f32 v24, v24, v26, v28")
e("v_max_f32 v24, v24, v30")
wave_max_u32("v32", sT[3], sT[2])
e(f"v_mul_f32 v24, {sT[2]}, v24")
setup_bases()
e(f"v_cmp_ngt_f32 vcc, {f2u(96.0):#x}, v24")
if FORCE_SLOW:
    e("s_branch L_slow")
else:
    e("s_cbranch_vccnz L_slow")
st_slow = g.state()


def poll3_issue():
    e(f"v_and_b32 {vT4}, 7, {vLANE}")
    e(f"v_lshlrev_b32 {vT4}, 2, {vT4}")
    e(f"s_lshl_b32 {sT[2]}, {sG}, 7")
    e(f"s_add_u32 {sT[2]}, {sT[2]}, {WS_FLAG3}")
    e(f"buffer_load_dword {vT5}, {vT4}, {SRD_WS}, {sT[2]} offen sc1")


def poll3_check(uniq):
    e(f"s_mov_b32 {sSPIN}, 0")
    g.label(f"L_p3c_{uniq}")
    e(f"v_cmp_ne_u32 vcc, {sNONCE}, {vT5}")
    e(f"s_cbranch_vccz L_p3k_{uniq}")
    st = g.state()
    spin_guard(f"L_p3k_{uniq}")
    e("s_sleep 4")
    poll3_issue()
    e("s_waitcnt vmcnt(0)")
    e(f"s_branch L_p3c_{uniq}")
    g.set_state(st)
    g.label(f"L_p3k_{uniq}")


def sentinel_ops():
    ops = []
    for f in range(2):
        ops.append(lambda f=f: st4(vr(SENT, 4), vL16, sOFW, f * 1024, tag="sent"))
    ops.append(lambda: st4(vr(SENT, 4), vHL16, sHFW, tag="sent"))

    def h1():
        e(f"s_add_u32 {sT[4]}, {sHFW}, {28*1024}")
        st4(vr(SENT, 4), vHL16, sT[4], tag="sent")
    ops.append(h1)
    return ops


def weave(vm, fill, per=64):
    k = 0
    for op, n in vm:
        op()
        left = per * n
        while left > 0 and k < len(fill):
            fill[k][0]()
            left -= fill[k][1]
            k += 1
    for op, _ in fill[k:]:
        op()


def reg(h, n):
    return vr(h[1], n) if h[0] == "v" else ar(h[1], n)


def w1home(t):
    return ("a", 8 * t) if t < 14 else (("a", 160 + 8 * (t - 14)) if t < 22 else ("v", 196 + 8 * (t - 22)))


def w2home(t):
    if t < 6:
        return ("a", 112 + 8 * t)
    if t < 10:
        return ("a", AQ + 8 * (t - 6))
    if t < 17:
        return ("v", 140 + 8 * (t - 10))
    return ("a", 8 * (t - 17))


def wohome(t):
    return ("a", 144 + 8 * t) if t < 2 else (("a", AQ + 8 * (t - 2)) if t < 6 else ("v", 148 + 8 * (t - 6)))


ACC5 = [160, 176, 192, 208]
ACS = 112


def stage_dma(mat, t, off, tag):
    e(f"s_add_u32 m0, {sLB}, {off}")
    if mat == 1:
        e(f"s_add_u32 {sT[6]}, {sW1B}, {t*16*3584}")
        dma(vD3584, SRD_W1, sT[6], 0, tag=tag)
        dma(vD3584b, SRD_W1, sT[6], 1024, tag=tag)
    elif mat == 2:
        if t % 4 == 0 or t in (11, 22):
            e(f"s_mul_i32 {sT[9]}, {sROT7[t//4]}, 14")
            e(f"s_add_u32 {sT[9]}, {sT[9]}, {sW2B}")
        e(f"s_add_u32 {sT[6]}, {sT[9]}, {(t%4)*16*896}")
        dma(vD896, SRD_W2, sT[6], 0, tag=tag)
        dma(vD896b, SRD_W2, sT[6], 1024, tag=tag)
    else:
        e(f"s_add_u32 {sT[6]}, {sWOB}, {t*16*896}")
        dma(vD896, SRD_WO, sT[6], 0, tag=tag)
        dma(vD896b, SRD_WO, sT[6], 1024, tag=tag)


def stage_tr(home, a0, a1, off):
    for c, ad in enumerate((a0, a1)):
        for hf in range(2):
            e(f"ds_read_b64_tr_b16 {reg((home[0], home[1]+4*c+2*hf), 2)}, {ad} offset:{off+hf*1024}")


def touch(srdn, per_wave, i):
    e(f"s_mul_i32 {sT[2]}, {sTCH}, {per_wave}")
    if i:
        e(f"s_add_u32 {sT[2]}, {sT[2]}, {i*3200}")
    e(f"buffer_load_dword {vDUM}, {vTCH}, {srdn}, {sT[2]} offen")


def w1_round_dma(ts, tag):
    return [lambda t=t, k=k: stage_dma(1, t, A_STG + 2048 * k, tag) for k, t in enumerate(ts)]


def w1_round_tr(ts, tag):
    def f(t, k):
        if k == 0:
            g.wait_tag(tag)
        stage_tr(w1home(t), vTR1, vTR1b, A_STG + 2048 * k)
    return [lambda t=t, k=k: f(t, k) for k, t in enumerate(ts)]


extras = {i: [] for i in range(-1, 70)}
for k, op in enumerate(sentinel_ops()):
    if not NOSENT or k == 0:
        extras[10 + 8 * k].append(op)
extras[46].append(lambda: (g.wait_tag("sent"), last_wave_signal_begin(12, vT6)))
extras[47].append(lambda: signal_end(vT6, 3, "f3"))
extras[54].append(poll3_issue)
extras[60].append(lambda: poll3_check("a"))
T0, TD = int(opt("--t0", 2)), int(opt("--td", 5))
if TOUCH:
    tl = [lambda: touch(SRD_WO, 3136, 0)] + [lambda i=i: touch(SRD_W1, 12544, i) for i in range(4)] + \
         [lambda i=i: touch(SRD_W2, 12544, i) for i in range(4)]
    for k, op in enumerate(tl):
        extras[T0 + TD * k + (TD if k >= 5 else 0)].append(op)
for t in range(7):
    extras[14 + 2 * t].append(lambda t=t: stage_dma(0, t, A_WO + 2048 * t, "wo"))
for st0_, ops in ((30, w1_round_dma(range(0, 4), "w1a")), (37, w1_round_tr(range(0, 4), "w1a")),
                  (42, w1_round_dma(range(4, 8), "w1b")), (50, w1_round_tr(range(4, 8), "w1b")),
                  (55, w1_round_dma(range(8, 13), "w1c"))):
    for k, op in enumerate(ops):
        if k == 0 and st0_ in (42, 55):
            extras[st0_].append(g.wait_lds)
        extras[st0_ + k].append(op)
for kt in range(2, NB):
    extras[kt - 2].insert(0, lambda kt=kt: kv_load(kt))
for kt in range(16 - NB):
    extras[4 * kt + 5].insert(0, lambda kt=kt: kv_load(kt + NB))


def comb_addr(s):
    e(f"s_add_u32 {sT[2]}, {sW}, {s+1}")
    e(f"s_and_b32 {sT[2]}, {sT[2]}, 3")
    e(f"s_mul_i32 {sT[2]}, {sT[2]}, {AREA}")
    e(f"s_add_u32 {sT[2]}, {sT[2]}, {L_X+A_EXC+s*4096}")
    e(f"v_add_u32 {(vT0, vT1, vT2)[s]}, {sT[2]}, {vL16}")


def comb_write(s, q):
    e(f"ds_write_b128 {(vT0, vT1, vT2)[s]}, {vr(OA+16*s+4*q,4)} offset:{q*1024}")


extras[61].append(lambda: [comb_addr(s) for s in range(3)])


def qk(i, half):
    kt, s = i >> 2, i & 3
    b = AKV + 16 * (kt % NB)
    S = vr(S0 if i % 2 == 0 else S1, 16)
    if half == 0 and s == 0:
        g.wait_regs(ar(b, 16) if kt else ar(b, 8))
    mfma32(S, ar(b + 4 * half, 4), ar(AQ + 8 * s + 4 * half, 4), S if half else "0")


def pv(i, half):
    kt, s = i >> 2, i & 3
    b = AKV + 16 * (kt % NB) + 8
    O = vr(OA + 16 * s, 16)
    if half == 0 and s == 0:
        g.wait_regs(ar(b, 8))
    P = P0 if i % 2 == 0 else P1
    mfma32(O, ar(b + 4 * half, 4), vr(P + 4 * half, 4), "0" if (kt == 0 and half == 0) else O)


g.raw(".p2align 3")
g.hot = True
qk(0, 0)
qk(0, 1)
stamp("attn0")
for i in range(64):
    S = S0 if i % 2 == 0 else S1
    P = P0 if i % 2 == 0 else P1
    for quarter in range(4):
        if quarter < 2:
            if i + 1 < 64:
                qk(i + 1, quarter)
        elif i > 0:
            pv(i - 1, quarter - 2)
        for op in extras[i][quarter::4] if len(extras[i]) <= 4 else (extras[i] if quarter == 0 else []):
            op()
        if quarter == 0 and i in (4, 8, 16, 24, 32, 40, 48, 56):
            stamp(f"a{i}")
        if (i == 62 and quarter >= 1) or (i == 63 and quarter == 0):
            comb_write(0, (quarter + 3) % 4)
        if i == 63 and quarter >= 1:
            comb_write(1, quarter - 1)
        r0 = 4 * quarter
        for r in range(r0, r0 + 4):
            e(f"v_exp_f32 v{S+r}, v{S+r}")
        if quarter > 0:
            e(f"v_cvt_pk_bf16_f32 v{P+2*quarter-1}, v{S+r0-2}, v{S+r0-1}")
        e(f"v_cvt_pk_bf16_f32 v{P+2*quarter}, v{S+r0}, v{S+r0+1}")
        if quarter == 3:
            e(f"v_cvt_pk_bf16_f32 v{P+7}, v{S+14}, v{S+15}")
pv(63, 0)
comb_write(1, 3)
pv(63, 1)
g.hot = False
e("s_branch L_comb2")
g.label("L_comb")
for s in range(3):
    comb_addr(s)
for s in range(2):
    for q in range(4):
        comb_write(s, q)
g.label("L_comb2")
stamp("attn1")
for q in range(4):
    comb_write(2, q)
e(f"v_add_u32 {vT0}, {sLB}, {vL16}")
OWN = OA + 48
g.barrier()
for q in range(4):
    for s in range(3):
        e(f"ds_read_b128 {vr(OA+16*s+4*q,4)}, {vT0} offset:{A_EXC+s*4096+((q+3)%4)*0+q*1024}")
for r in (12, 14, 0, 2, 4, 6, 8, 10):
    for s in range(3):
        e(f"v_pk_add_f32 {vr(OWN+r,2)}, {vr(OWN+r,2)}, {vr(OA+16*s+r,2)}")
    if r == 14:
        e(f"v_mov_b32 {vT0}, v{OWN+12}")
        e(f"v_mov_b32 {vT2}, v{OWN+12}")
        e(f"v_permlane32_swap_b32 {vT0}, {vT2}")
        e(f"v_rcp_f32 {vT1}, {vT2}")
for f in range(2):
    for r in range(8 * f, 8 * f + 8, 2):
        e(f"v_pk_mul_f32 {vr(OWN+r,2)}, {vr(OWN+r,2)}, v[8:9] op_sel_hi:[1,0]")
    for r in range(4 * f, 4 * f + 4):
        e(f"v_cvt_pk_bf16_f32 v{S0+r}, v{OWN+2*r}, v{OWN+2*r+1}")
    if f:
        e(f"v_cndmask_b32 v{S0+6}, v{S0+6}, {vZERO}, {sMASKH}")
        e(f"v_cndmask_b32 v{S0+7}, v{S0+7}, {vZERO}, {sMASKH}")
    st4(vr(S0 + 4 * f, 4), vL16, sOFW, 1024 * f)
stamp("ostore")
e(f"s_cmp_eq_u32 {sJ}, 7")
e("s_cbranch_scc1 L_fin7")
OFR = [20 + 4 * i for i in range(12)] + [132 + 4 * i for i in range(4)]
ACC3 = OA
ONES2 = vr(180, 4)


def cs_mfma(t):
    hm = w1home(t)
    for c in range(2):
        mfma32(ar(ACS + 16 * c, 16), reg((hm[0], hm[1] + 4 * c), 4), ONES2, ar(ACS + 16 * c, 16) if t else "0")


def o_load_ops():
    ops = []
    for rt in range(2):
        for hl in range(4):
            def f(rt=rt, hl=hl):
                e(f"s_add_u32 {sT[2]}, {sOFR}, {sRO[hl]}")
                for f_ in range(2):
                    ld4(vr(OFR[8 * rt + 2 * hl + f_], 4), vT5 if rt else vL16, sT[2], 1024 * f_)
            ops.append(f)
    return ops


def wo_tr(hl):
    e(f"v_add_u32 {vT1}, {sRL[hl]}, {vTR2}")
    e(f"v_add_u32 {vT2}, {sRL[hl]}, {vTR2b}")
    for f in range(2):
        stage_tr(wohome(2 * hl + f), vT1, vT2, A_WO + 2048 * f)


for op in w1_round_tr(range(8, 13), "w1c"):
    op()
for i in range(4):
    e(f"v_mov_b32 v{180+i}, 0x3f803f80")
e(f"v_add_u32 {vT5}, 0x8000, {vL16}")
g.barrier()
g.wait_tag("wo")
weave([(op, 2) for op in w1_round_dma(range(13, 18), "w1d") + o_load_ops()],
      [(lambda hl=hl: wo_tr(hl), 48) for hl in range(4)] + [(lambda t=t: cs_mfma(t), 64) for t in range(13)])
stamp("oissue")
e(f"s_mov_b32 {sSPIN}, 0")


def exch_addr(delta, dst, off):
    e(f"s_xor_b32 {sT[2]}, {sW}, {delta}")
    e(f"s_mul_i32 {sT[2]}, {sT[2]}, {AREA}")
    e(f"s_add_u32 {sT[2]}, {sT[2]}, {L_X+off+(delta-1)*4096}")
    e(f"v_add_u32 {dst}, {sT[2]}, {vL16}")


vEX = [vT1, vT2, vT4]
for d in range(1, 4):
    exch_addr(d, vEX[d - 1], A_EXC)
for op in w1_round_tr(range(13, 18), "w1d"):
    op()
g.label("L_p3_body")
e(f"v_mov_b32 {vCHK}, 0")
for rt in range(2):
    for t in range(8):
        B = OFR[8 * rt + t]
        hm = wohome(t)
        for a in range(2):
            acc = vr(ACC3 + 32 * rt + 16 * a, 16)
            mfma32(acc, reg((hm[0], hm[1] + 4 * a), 4), vr(B, 4), acc if t else "0")
            e(f"v_max3_u32 {vCHK}, {vCHK}, v{B+2*a}, v{B+2*a+1}")
        if rt == 0 and t == 2:
            g.wait_lds()
        if 8 * rt + t >= 4 and (8 * rt + t) % 2 == 0 and (8 * rt + t - 4) // 2 < 5:
            w1_round_dma(range(18, 23), "w1e")[(8 * rt + t - 4) // 2]()
        if rt == 1 and 2 <= t < 8:
            d, q = 1 + (t - 2) // 2, t % 2
            e(f"ds_write_b128 {vEX[d-1]}, {vr(ACC3+16*(d&1)+8*(d>>1)+4*q,4)} offset:{q*1024}")
e(f"v_cmp_eq_u32 vcc, -1, {vCHK}")
e("s_cbranch_vccz L_p3_ok")
st = g.state()
spin_guard("L_p3_ok")
e("s_sleep 2")
for op in o_load_ops():
    op()
e("s_waitcnt vmcnt(0)")
e("s_branch L_p3_body")
g.set_state(st)
g.label("L_p3_ok")
stamp("p3gemm")
pcount("p3")
XU = 20
for rt in range(2):
    for i in range(4):
        e(f"v_lshlrev_b32 v{XU+8*rt+2*i}, 16, v{XRES+4*rt+i}")
        e(f"v_and_b32 v{XU+8*rt+2*i+1}, 0xffff0000, v{XRES+4*rt+i}")
for d in range(1, 4):
    for q in range(2):
        e(f"ds_write_b128 {vEX[d-1]}, {vr(ACC3+32+16*(d&1)+8*(d>>1)+4*q,4)} offset:{2048+q*1024}")
for rt in range(2):
    for r in range(0, 8, 2):
        e(f"v_pk_add_f32 {vr(ACC3+32*rt+r,2)}, {vr(ACC3+32*rt+r,2)}, {vr(XU+8*rt+r,2)}")
e(f"v_add_u32 {vT0}, {sLB}, {vL16}")
e(f"s_add_u32 {sT[4]}, {sHFW}, {28*1024}")
g.barrier()
RB = 20
for rt in range(2):
    for d in range(3):
        for q in range(2):
            e(f"ds_read_b128 {vr(RB+24*rt+8*d+4*q,4)}, {vT0} offset:{A_EXC+d*4096+rt*2048+q*1024}")
for rt in range(2):
    A = ACC3 + 32 * rt
    for d in range(3):
        for r in range(0, 8, 2):
            e(f"v_pk_add_f32 {vr(A+r,2)}, {vr(A+r,2)}, {vr(RB+24*rt+8*d+r,2)}")
    for i in range(4):
        e(f"v_cvt_pk_bf16_f32 v{XRES+4*rt+i}, v{A+2*i}, v{A+2*i+1}")
    e(f"buffer_store_dwordx4 {vr(XRES+4*rt,4)}, {vL16}, {SRD_WS}, {sT[4] if rt else sHFW} offen sc1")
stamp("hstore")
HS = 20


def h_load_ops():
    def f(t):
        if t % 4 == 0:
            e(f"s_add_u32 {sT[2]}, {sHFR}, {t*1024}")
        ld4(vr(HS + 4 * t, 4), vL16, sT[2], (t % 4) * 1024)
    return [lambda t=t: f(t) for t in range(14)]


def cs_out():
    e(f"s_lshl_b32 {sT[3]}, {sW}, 8")
    e(f"v_lshrrev_b32 {vT0}, 5, {vLANE}")
    e(f"v_lshl_add_u32 {vT0}, {vT0}, 4, {sT[3]}")
    e("s_mov_b32 exec_lo, 1")
    e("s_mov_b32 exec_hi, 1")
    for c in range(2):
        for q in range(4):
            e(f"ds_write_b128 {vT0}, {ar(ACS+16*c+4*q,4)} offset:{L_MX+c*128+q*32}")
    e("s_mov_b64 exec, -1")
    e(f"v_and_b32 {vT2}, 31, {vLANE}")
    e(f"v_lshl_add_u32 {vT0}, {vT2}, 2, {sT[3]}")
    e(f"ds_read_b32 v84, {vT0} offset:{L_MX}")
    e(f"ds_read_b32 v85, {vT0} offset:{L_MX+128}")


def poll4_issue():
    e(f"s_lshl_b32 {sT[3]}, {sG}, 7")
    e(f"s_add_u32 {sT[3]}, {sT[3]}, {WS_FLAG4}")
    e(f"buffer_load_dword v86, {vZERO}, {SRD_WS}, {sT[3]} offen sc1")


for op in w1_round_tr(range(18, 23), "w1e"):
    op()
g.wait_lds()
weave([(op, 2) for op in w1_round_dma(range(23, 28), "w1f")] + [(op, 1) for op in h_load_ops()] + [(poll4_issue, 0)],
      [(lambda t=t: cs_mfma(t), 64) for t in range(13, 23)] + [(op, 20) for op in w1_round_tr(range(23, 28), "w1f")] +
      [(lambda t=t: cs_mfma(t), 64) for t in range(23, 28)])
stamp("w5fill")
cs_out()
e(f"v_add_u32 {vT1}, {sLB}, {vL16}")
e(f"s_mov_b32 {sSPIN}, 0")
g.label("L_p4_body")
e(f"v_mov_b32 {vCHK}, 0")
for t in range(14):
    B = HS + 4 * t
    e(f"ds_write_b128 {vT1}, {vr(B,4)} offset:{A_WO+t*1024}")
    e(f"v_max3_u32 {vCHK}, {vCHK}, v{B}, v{B+1}")
    e(f"v_max3_u32 {vCHK}, {vCHK}, v{B+2}, v{B+3}")
    for i in range(4):
        a, q = ("v76", "v77") if i % 2 == 0 else ("v78", "v79")
        first = t == 0 and i < 2
        e(f"v_dot2_f32_bf16 {a}, v{B+i}, v180, {'0' if first else a}")
        e(f"v_dot2_f32_bf16 {q}, v{B+i}, v{B+i}, {'0' if first else q}")
e(f"v_cmp_eq_u32 vcc, -1, {vCHK}")
e("s_cbranch_vccz L_p4_ok")
st = g.state()
spin_guard("L_p4_ok")
e("s_sleep 2")
for op in h_load_ops():
    op()
e("s_waitcnt vmcnt(0)")
e("s_branch L_p4_body")
g.set_state(st)
g.label("L_p4_ok")
e("v_pk_add_f32 v[76:77], v[76:77], v[78:79]")
e(f"v_lshlrev_b32 {vT0}, 3, {vLANE}")
e(f"s_lshl_b32 {sT[2]}, {sW}, 9")
e(f"v_add_u32 {vT0}, {sT[2]}, {vT0}")
e(f"ds_write_b64 {vT0}, v[76:77] offset:{L_SQ}")
e(f"s_mov_b32 {sSPIN}, 0")
g.label("L_p4c")
e(f"v_cmp_ne_u32 vcc, {sNONCE}, v86")
e("s_cbranch_vccz L_p4k")
st = g.state()
spin_guard("L_p4k")
e("s_sleep 4")
poll4_issue()
e("s_waitcnt vmcnt(0)")
e("s_branch L_p4c")
g.set_state(st)
g.label("L_p4k")
stamp("hload")
pcount("p4")
g.barrier()
stamp("B7")
ACC1 = [20, 108]
BR, B1R, GT, PKR = 52, 68, 84, 92
AEX, BEX = [188, 192], [244, 248]
vRS = ["v104", "v105"]
vC0, vB1A = "v106", "v107"
vHB = [vT0, vT1, vT4, vT5]
e(f"v_lshlrev_b32 {vT2}, 3, {vT2}")
e(f"v_add_u32 {vT2}, {L_SQ}, {vT2}")
for rt in range(2):
    e(f"ds_read2_b64 {vr(B1R+8*rt,4)}, {vT2} offset0:{rt*64} offset1:{rt*64+32}")
    e(f"ds_read2_b64 {vr(B1R+8*rt+4,4)}, {vT2} offset0:{rt*64+128} offset1:{rt*64+160}")
for k in range(4):
    e(f"v_add_u32 {vHB[k]}, {L_X+k*AREA+A_WO}, {vL16}")
bcount = [0]


def b_read(rt, t):
    n = bcount[0]
    bcount[0] += 1
    e(f"ds_read_b128 {vr(BR+4*(n%4),4)}, {vHB[2*(t//14)+rt]} offset:{(t%14)*1024}")


bseq = [(0, t) for t in range(28)] + [(0, t) for t in range(28)] + [(1, t) for t in range(28)]
for n in range(3):
    b_read(*bseq[n])
C0 = -2.0 * (2 / 3.141592653589793) ** 0.5 * 1.4426950408889634
C1 = C0 * 0.044715


def ln2_ops():
    ops = []
    A = ops.append
    for c in range(2):
        A(f"v_cvt_pk_bf16_f32 v86, v{84+c}, {vZERO}")
        A(f"v_lshlrev_b32 v87, 16, v86")
        A(f"v_sub_f32 v87, v{84+c}, v87")
        A(f"v_cvt_pk_bf16_f32 v{AEX[c]}, v{84+c}, v87")
        A(f"v_mov_b32 v{AEX[c]+1}, v86")
        A(f"v_mov_b32 v{AEX[c]+2}, 0")
        A(f"v_mov_b32 v{AEX[c]+3}, 0")
    for rt in range(2):
        T = B1R + 8 * rt
        A(f"v_pk_add_f32 {vr(T,2)}, {vr(T,2)}, {vr(T+2,2)}")
        A(f"v_pk_add_f32 {vr(T+4,2)}, {vr(T+4,2)}, {vr(T+6,2)}")
        A(f"v_pk_add_f32 {vr(T,2)}, {vr(T,2)}, {vr(T+4,2)}")
        A(f"v_mul_f32 v{T}, {f2u(-1/448):#x}, v{T}")
        A(f"v_mul_f32 v{T+1}, {f2u(1/448):#x}, v{T+1}")
        A(f"v_fma_f32 v{T+1}, -v{T}, v{T}, v{T+1}")
        A(f"v_max_f32 v{T+1}, 0, v{T+1}")
        A(f"v_add_f32 v{T+1}, {f2u(1e-5):#x}, v{T+1}")
        A(f"v_rsq_f32 {vRS[rt]}, v{T+1}")
        A(f"v_cvt_pk_bf16_f32 v{BEX[rt]}, v{T}, v{T}")
        A(f"v_lshlrev_b32 v{T+2}, 16, v{BEX[rt]}")
        A(f"v_sub_f32 v{T+2}, v{T}, v{T+2}")
        A(f"v_cvt_pk_bf16_f32 v{BEX[rt]+1}, v{T+2}, {vZERO}")
        A(f"v_cndmask_b32 v{BEX[rt]}, v{BEX[rt]}, {vZERO}, {sMASKH}")
        A(f"v_cndmask_b32 v{BEX[rt]+1}, v{BEX[rt]+1}, {vZERO}, {sMASKH}")
        A(f"v_mov_b32 v{BEX[rt]+2}, 0")
        A(f"v_mov_b32 v{BEX[rt]+3}, 0")
    A(f"v_mov_b32 {vC0}, {f2u(C0):#x}")
    A(f"v_lshrrev_b32 {vB1A}, 5, {vLANE}")
    A(f"v_lshlrev_b32 {vB1A}, 4, {vB1A}")
    A(f"s_lshl_b32 {sT[2]}, {sW}, 8")
    A(f"v_add_u32 {vB1A}, {sT[2]}, {vB1A}")
    A(f"s_add_u32 {sT[5]}, {sHIDW}, {112*1024}")
    return [lambda x=x: e(x) for x in ops]


def gelu_ops(rt, c, pk=False):
    ops = []
    A = ACC1[rt] + 16 * c
    for q in range(4):
        ops.append(lambda q=q: e(f"ds_read_b128 {vr(B1R+4*q,4)}, {vB1A} offset:{L_B1+c*128+q*32}"))
    for grp in range(4):
        rs = [A + 4 * grp + i for i in range(4)]
        ts = [GT + 4 * (grp % 2) + i for i in range(4)]
        P2 = lambda x: vr(x, 2)
        if not pk:
            seq = [lambda r, t_: [f"v_fma_f32 v{r}, v{r}, {vRS[rt]}, v{B1R+r-A}"],
                   lambda r, t_: [f"v_mul_f32 v{t_}, v{r}, v{r}"],
                   lambda r, t_: [f"v_fmamk_f32 v{t_}, v{t_}, {f2u(C1):#x}, {vC0}"],
                   lambda r, t_: [f"v_mul_f32 v{t_}, v{t_}, v{r}"],
                   lambda r, t_: [f"v_exp_f32 v{t_}, v{t_}"],
                   lambda r, t_: [f"v_add_f32 v{t_}, 1.0, v{t_}"],
                   lambda r, t_: [f"v_rcp_f32 v{t_}, v{t_}"],
                   lambda r, t_: [f"v_mul_f32 v{r}, v{r}, v{t_}"]]
        else:
            ev = lambda r, x: [x] if r % 2 == 0 else []
            seq = [lambda r, t_: ev(r, f"v_pk_fma_f32 {P2(r)}, {P2(r)}, v[104:105], {P2(B1R+r-A)} op_sel:[0,{rt},0] op_sel_hi:[1,{rt},1]"),
                   lambda r, t_: ev(r, f"v_pk_mul_f32 {P2(t_)}, {P2(r)}, {P2(r)}"),
                   lambda r, t_: ev(r, f"v_pk_fma_f32 {P2(t_)}, {P2(t_)}, v[100:101], v[106:107] op_sel_hi:[1,0,0]"),
                   lambda r, t_: ev(r, f"v_pk_mul_f32 {P2(t_)}, {P2(t_)}, {P2(r)}"),
                   lambda r, t_: [f"v_exp_f32 v{t_}, v{t_}"],
                   lambda r, t_: ev(r, f"v_pk_add_f32 {P2(t_)}, {P2(t_)}, v[100:101] op_sel:[0,1] op_sel_hi:[1,1]"),
                   lambda r, t_: [f"v_rcp_f32 v{t_}, v{t_}"],
                   lambda r, t_: ev(r, f"v_pk_mul_f32 {P2(r)}, {P2(r)}, {P2(t_)}")]
        for fn in seq:
            for r, t_ in zip(rs, ts):
                for x in fn(r, t_):
                    ops.append(lambda x=x: e(x))
        PK = PKR + 4 * (grp >> 1)
        for i in range(2):
            ops.append(lambda PK=PK, grp=grp, i=i, rs=rs: e(f"v_cvt_pk_bf16_f32 v{PK+2*(grp&1)+i}, v{rs[2*i]}, v{rs[2*i+1]}"))
        if grp & 1:
            ops.append(lambda PK=PK, f=grp >> 1: st4(vr(PK, 4), vL16, sT[5] if rt else sHIDW, c * 2048 + f * 1024))
    return ops


def w2slot(k):
    return A_EXC + 2048 * k if k < 6 else A_STG + 2048 * (k - 6)


def spread(ops, n, m, start=0):
    if m < start:
        return []
    a = (m - start) * len(ops) // (n - start)
    b = (m - start + 1) * len(ops) // (n - start)
    return ops[a:b]


def ffn1_mfma(rt, c, t, n):
    acc = vr(ACC1[rt] + 16 * c, 16)
    hm = w1home(t)
    mfma32(acc, reg((hm[0], hm[1] + 4 * c), 4), vr(BR + 4 * (n % 4), 4), acc if t else "0")


def ext_mfma(rt, c):
    acc = vr(ACC1[rt] + 16 * c, 16)
    mfma32(acc, vr(AEX[c], 4), vr(BEX[rt], 4), acc)


g.raw(".p2align 3")
g.hot = True
def tr2(k, slot, tag):
    g.wait_tag(tag)
    stage_tr(w2home(k), vTR2, vTR2b, w2slot(slot))


at = {m: [] for m in range(112)}
for k in range(11):
    at[4 * k if k < 7 else 28 + 3 * (k - 7)].append(lambda k=k: stage_dma(2, k, w2slot(k), f"w2a{k}"))
for k in range(11):
    at[(20 + 2 * k) if k < 4 else 30 + 2 * k].append(lambda k=k: tr2(k, k, f"w2a{k}"))
at[52].append(g.wait_lds)
for k in range(11, 22):
    at[52 + 37 * (k - 11) // 10].append(lambda k=k: stage_dma(2, k, w2slot(k - 11), f"w2b{k}"))
for k in range(11, 16):
    at[80 + 2 * (k - 11)].append(lambda k=k: tr2(k, k - 11, f"w2b{k}"))
at[93].append(g.wait_lds)
for k in range(22, 27):
    at[93 + 4 * (k - 22)].append(lambda k=k: stage_dma(2, k, w2slot(k - 22), f"w2c{k}"))
fill = ln2_ops()
for t in range(28):
    ffn1_mfma(0, 0, t, t)
    b_read(*bseq[t + 3])
    for op in at[t] + spread(fill, 20, t):
        op()
ext_mfma(0, 0)
stamp("ffn1q0")
fill = gelu_ops(0, 0)
for t in range(28):
    ffn1_mfma(0, 1, t, 28 + t)
    b_read(*bseq[28 + t + 3])
    for op in at[28 + t] + spread(fill, 28, t, 2):
        op()
ext_mfma(0, 1)
stamp("ffn1q1")
fill = gelu_ops(0, 1)
for t in range(28):
    for c in range(2):
        ffn1_mfma(1, c, t, 56 + t)
        if c == 0 and 56 + t + 3 < 84:
            b_read(*bseq[56 + t + 3])
        for op in at[56 + 2 * t + c] + spread(fill, 40, 2 * t + c, 2):
            op()
ext_mfma(1, 0)
ext_mfma(1, 1)
e("s_barrier")
stamp("ffn1b")
HR = 20


def hid_load(rt, t):
    if t % 4 == 0:
        e(f"s_add_u32 {sT[7+rt]}, {sHIDR}, {sROT7[t//4]}")
        if rt:
            e(f"s_add_u32 {sT[7+rt]}, {sT[7+rt]}, {112*1024}")
    ld4(vr(HR + 4 * t, 4), vL16, sT[7 + rt], (t % 4) * 1024)


tr2(16, 5, "w2b16")
e(f"v_mov_b32 v100, {f2u(C1):#x}")
e(f"v_mov_b32 v101, 1.0")
gops = gelu_ops(1, 0, True) + gelu_ops(1, 1, True)
EARLY = 12
E0 = int(opt("--e0", 40))
for k, op in enumerate(gops):
    op()
    if k == 8:
        g.wait_lds()
        stage_dma(2, 27, w2slot(5), "w2c27")
    if k >= E0 and (k - E0) % 12 == 0 and (k - E0) // 12 < EARLY:
        hid_load(0, (k - E0) // 12)
assert (len(gops) - 1 - E0) // 12 >= EARLY - 1, len(gops)
g.hot = False
stamp("gelu1")
LAG = 10
e(f"s_mov_b32 {sSPIN}, 0")
weave([(lambda t=t: hid_load(0, t), 1) for t in range(EARLY, 28)],
      [(lambda k=k: tr2(k, k - 11, f"w2b{k}"), 32) for k in range(17, 22)] +
      [(lambda k=k: tr2(k, k - 22, f"w2c{k}"), 32) for k in range(22, 28)] +
      [(lambda d=d: exch_addr(d, vEX[d - 1], A_WO), 16) for d in range(1, 4)])


def ffn2_step(rt, t):
    B = HR + 4 * t
    hm = w2home(t)
    for a in range(2):
        acc = ar(ACC5[2 * rt + a], 16)
        mfma32(acc, reg((hm[0], hm[1] + 4 * a), 4), vr(B, 4), acc if t else "0")
        e(f"v_max3_u32 {vCHK}, {vCHK}, v{B+2*a}, v{B+2*a+1}")


g.label("L_p5a_body")
e(f"v_mov_b32 {vCHK}, 0")
for t in range(28):
    ffn2_step(0, t)
    if t >= LAG:
        hid_load(1, t - LAG)
e(f"v_cmp_eq_u32 vcc, -1, {vCHK}")
e("s_cbranch_vccz L_p5a_ok")
st = g.state()
spin_guard("L_p5a_ok")
e("s_waitcnt vmcnt(0)")
e("s_sleep 2")
for t in range(28):
    hid_load(0, t)
e("s_waitcnt vmcnt(0)")
e("s_branch L_p5a_body")
g.set_state(st)
g.label("L_p5a_ok")
stamp("ffn2a")
pcount("p5a")
for t in range(28 - LAG, 28):
    hid_load(1, t)
FA = 196
e(f"s_lshl_b32 {sT[2]}, {sJ}, 7")
e(f"s_sub_u32 {sT[2]}, {sC}, {sT[2]}")
e(f"s_lshl_b32 {sT[2]}, {sT[2]}, 1")
e(f"v_lshrrev_b32 {vT5}, 5, {vLANE}")
e(f"v_lshl_add_u32 {vT0}, {vT5}, 4, {sT[2]}")
e(f"ds_read_b128 v[212:215], {vT0} offset:{L_B2}")
e(f"ds_read_b128 v[216:219], {vT0} offset:{L_B2+32}")
for d in range(1, 4):
    for q in range(2):
        e(f"ds_write_b128 {vEX[d-1]}, {ar(ACC5[d&1]+8*(d>>1)+4*q,4)} offset:{q*1024}")
for rt in range(2):
    for i in range(4):
        e(f"v_lshlrev_b32 v{FA+8*rt+2*i}, 16, v{XRES+4*rt+i}")
        e(f"v_and_b32 v{FA+8*rt+2*i+1}, 0xffff0000, v{XRES+4*rt+i}")
    for r in range(0, 8, 2):
        e(f"v_pk_add_f32 {vr(FA+8*rt+r,2)}, {vr(FA+8*rt+r,2)}, {vr(212+r,2)}")
for r in range(8):
    e(f"v_accvgpr_read_b32 v{220+r}, a{ACC5[0]+r}")
for r in range(0, 8, 2):
    e(f"v_pk_add_f32 {vr(FA+r,2)}, {vr(FA+r,2)}, {vr(220+r,2)}")
e(f"v_and_b32 {vT0}, 31, {vLANE}")
e(f"v_mul_u32_u24 {vT0}, 896, {vT0}")
e(f"v_lshl_add_u32 {vT5}, {vT5}, 4, {vT0}")
e(f"v_add_u32 {vT0}, {sLB}, {vL16}")
e(f"s_mul_i32 {sT[3]}, {sG}, {64*896}")
e(f"s_add_u32 {sT[3]}, {sT[3]}, {sC}")
e(f"s_add_u32 {sT[4]}, {sT[3]}, {32*896}")
e(f"s_mov_b32 {sSPIN}, 0")
g.label("L_p5b_body")
e(f"v_mov_b32 {vCHK}, 0")
for t in range(28):
    ffn2_step(1, t)
e(f"v_cmp_eq_u32 vcc, -1, {vCHK}")
e("s_cbranch_vccz L_p5b_ok")
st = g.state()
spin_guard("L_p5b_ok")
e("s_sleep 2")
for t in range(28):
    hid_load(1, t)
e("s_waitcnt vmcnt(0)")
e("s_branch L_p5b_body")
g.set_state(st)
g.label("L_p5b_ok")
stamp("ffn2b")
pcount("p5b")
for d in range(1, 4):
    for q in range(2):
        e(f"ds_write_b128 {vEX[d-1]}, {ar(ACC5[2+(d&1)]+8*(d>>1)+4*q,4)} offset:{2048+q*1024}")
for r in range(8):
    e(f"v_accvgpr_read_b32 v{220+r}, a{ACC5[2]+r}")
for r in range(0, 8, 2):
    e(f"v_pk_add_f32 {vr(FA+8+r,2)}, {vr(FA+8+r,2)}, {vr(220+r,2)}")
g.barrier()
for rt in range(2):
    for d in range(3):
        for q in range(2):
            e(f"ds_read_b128 {vr(RB+24*rt+8*d+4*q,4)}, {vT0} offset:{A_WO+d*4096+rt*2048+q*1024}")
for rt in range(2):
    A = FA + 8 * rt
    for d in range(3):
        for r in range(0, 8, 2):
            e(f"v_pk_add_f32 {vr(A+r,2)}, {vr(A+r,2)}, {vr(RB+24*rt+8*d+r,2)}")
    OQ = 96 + 4 * rt
    for i in range(4):
        e(f"v_cvt_pk_bf16_f32 v{OQ+i}, v{A+2*i}, v{A+2*i+1}")
    e(f"v_permlane32_swap_b32 v{OQ}, v{OQ+2}")
    e(f"v_permlane32_swap_b32 v{OQ+1}, v{OQ+3}")
    e(f"buffer_store_dwordx4 {vr(OQ,4)}, {vT5}, {SRD_OUT}, {sT[3+rt]} offen")

stamp("end")
if PROF:
    e("s_memrealtime s[42:43]")
    e("s_waitcnt lgkmcnt(0)")
    e("v_writelane_b32 v255, s42, 61")
if PROF:
    e(f"s_lshl_b32 {sT[2]}, s2, 2")
    e(f"s_add_u32 {sT[2]}, {sT[2]}, {sW}")
    e(f"s_lshl_b32 {sT[2]}, {sT[2]}, 8")
    e(f"s_add_u32 {sT[2]}, {sT[2]}, {WS_PROF}")
    e(f"v_lshlrev_b32 {vT0}, 2, {vLANE}")
    e(f"buffer_store_dword v255, {vT0}, {SRD_WS}, {sT[2]} offen")
    if "--dbg" in sys.argv:
        want = ["B1", "kvstore", "B3", "qgemm", "B5", "attn0", "a16", "a32", "attn1", "p3gemm", "hstore", "B7", "ffn1b", "ffn2a", "end"]
        e(f"s_cmp_lg_u32 s2, {int(sys.argv[sys.argv.index('--dbg')+1])}")
        e("s_cbranch_scc1 L_end")
        e(f"s_cmp_lg_u32 {sW}, 0")
        e("s_cbranch_scc1 L_end")
        e("v_readlane_b32 s16, v255, 0")
        for k, nme in enumerate(want):
            e(f"v_readlane_b32 s17, v255, {PROF_NAMES.index(nme)}")
            e("s_sub_u32 s17, s17, s16")
            e(f"v_writelane_b32 v250, s17, {k+1}")
        e("s_mov_b64 exec, 0xfffe")
        e(f"buffer_store_dword v250, {vT0}, {SRD_DBG}, 0 offen")
g.label("L_end")
e("s_endpgm")
g.label("L_fin7")
e(f"s_mul_i32 {sT[2]}, {sW}, {28*1024}")
e(f"s_add_u32 {sT[2]}, {sT[2]}, {sHIDR}")
e(f"s_mov_b32 {sT[3]}, 14")
g.label("L_fin7_loop")
for i in range(4):
    st4(vr(SENT, 4), vL16, sT[2], 1024 * i)
e(f"s_addk_i32 {sT[2]}, 4096")
e(f"s_sub_u32 {sT[3]}, {sT[3]}, 1")
e(f"s_cmp_lg_u32 {sT[3]}, 0")
e("s_cbranch_scc1 L_fin7_loop")
e("s_waitcnt vmcnt(0)")
e("s_barrier")
e(f"s_cmp_lg_u32 {sW}, 0")
e("s_cbranch_scc1 L_end")
e(f"s_lshl_b32 {sT[3]}, {sG}, 7")
e(f"s_add_u32 {sT[3]}, {sT[3]}, {WS_FLAG4}")
e(f"v_mov_b32 {vT0}, {sNONCE}")
e("s_mov_b64 exec, 1")
e(f"buffer_store_dword {vT0}, {vZERO}, {SRD_WS}, {sT[3]} offen sc1")
e("s_endpgm")

g.set_state(st_slow)
g.label("L_slow")
e("s_waitcnt vmcnt(0) lgkmcnt(0)")
for op in sentinel_ops():
    op()
e("s_waitcnt vmcnt(0)")
last_wave_signal_begin(12, vT6)
signal_end(vT6, 3, "f3s")
for t in range(7):
    stage_dma(0, t, A_WO + 2048 * t, "wo")
for ts in (range(0, 4), range(4, 8)):
    for op in w1_round_dma(ts, "w1s") + w1_round_tr(ts, "w1s"):
        op()
    g.wait_lds()
for op in w1_round_dma(range(8, 13), "w1c"):
    op()
poll3_issue()
poll3_check("b")
MM = 60
for s in range(4):
    e(f"v_mov_b32 v{MM+s}, 0xff7fffff")
    for r in range(16):
        e(f"v_mov_b32 v{OA+16*s+r}, 0")
e(f"s_mov_b32 {sT[8]}, 0")
g.label("L_slow_loop")
for i in range(4):
    ld4(vr(KVB + 4 * i, 4), vL16, sKV, i * 1024)
e("s_waitcnt vmcnt(0)")
for s in range(4):
    S = vr(S0, 16)
    mfma32(S, vr(KVB, 4), ar(AQ + 8 * s, 4), "0")
    mfma32(S, vr(KVB + 4, 4), ar(AQ + 8 * s + 4, 4), S)
    e(f"v_max3_f32 v64, v{S0}, v{S0+1}, v{MM+s}")
    for r in range(2, 16, 2):
        e(f"v_max3_f32 v64, v{S0+r}, v{S0+r+1}, v64")
    e("v_mov_b32 v65, v64")
    e("v_permlane32_swap_b32 v64, v65")
    e("v_max_f32 v64, v64, v65")
    e(f"v_sub_f32 v65, v{MM+s}, v64")
    e("v_exp_f32 v65, v65")
    e(f"v_mov_b32 v{MM+s}, v64")
    for r in range(16):
        e(f"v_sub_f32 v{S0+r}, v{S0+r}, v64")
        e(f"v_exp_f32 v{S0+r}, v{S0+r}")
        e(f"v_mul_f32 v{OA+16*s+r}, v65, v{OA+16*s+r}")
    for r in range(8):
        e(f"v_cvt_pk_bf16_f32 v{P0+r}, v{S0+2*r}, v{S0+2*r+1}")
    O = vr(OA + 16 * s, 16)
    mfma32(O, vr(KVB + 8, 4), vr(P0, 4), O)
    mfma32(O, vr(KVB + 12, 4), vr(P0 + 4, 4), O)
e(f"s_add_u32 {sKV}, {sKV}, 4096")
e(f"s_add_u32 {sT[8]}, {sT[8]}, 1")
e(f"s_cmp_lt_u32 {sT[8]}, 16")
e("s_cbranch_scc1 L_slow_loop")
e(f"v_lshlrev_b32 {vT1}, 2, {vLANE}")
for s in range(4):
    e(f"s_add_u32 {sT[2]}, {sW}, {s+1}")
    e(f"s_and_b32 {sT[2]}, {sT[2]}, 3")
    e(f"s_lshl_b32 {sT[2]}, {sT[2]}, 10")
    e(f"v_add_u32 v{64+s}, {sT[2]}, {vT1}")
    e(f"s_lshl_b32 {sT[3]}, {sW}, 8")
    e(f"v_add_u32 {vT0}, {sT[3]}, v{64+s}")
    e(f"ds_write_b32 {vT0}, v{MM+s} offset:{L_MX}")
g.barrier()
for s in range(4):
    for k in range(4):
        e(f"ds_read_b32 v{S0+k}, v{64+s} offset:{L_MX+k*256}")
    e(f"v_max3_f32 v{S0}, v{S0}, v{S0+1}, v{S0+2}")
    e(f"v_max_f32 v{S0}, v{S0}, v{S0+3}")
    e(f"v_sub_f32 v{S0}, v{MM+s}, v{S0}")
    e(f"v_exp_f32 v{S0}, v{S0}")
    for r in range(16):
        e(f"v_mul_f32 v{OA+16*s+r}, v{S0}, v{OA+16*s+r}")
g.barrier()
e("s_waitcnt vmcnt(0) lgkmcnt(0)")
e("s_branch L_comb")
g.label("L_code_end")

body = g.finish()
n, nbytes, nops = g.stats()
body = body.replace("0x11111,", "L_code_end-L_pcref-4,")

HEADER = open("cdna_kernels/" + KNAME[:-7] + ".s.ref").read().split("; Override launch")[0]
src = HEADER + f"""; One persistent launch, 256 workgroups (one per CU), hand-offs between workgroups through d_ws.
; @launch grid=(256,1,1) block=(256,1,1) lds={LDS_BYTES}
.amdgcn_target "amdgcn-amd-amdhsa--gfx950"
.text
.globl {KNAME}
.p2align 8
.type {KNAME},@function
{body}
.section .rodata,"a"
.p2align 6
.amdhsa_kernel {KNAME}
  .amdhsa_next_free_vgpr 512
  .amdhsa_next_free_sgpr 102
  .amdhsa_accum_offset 256
  .amdhsa_group_segment_fixed_size 0
  .amdhsa_kernarg_size 104
  .amdhsa_user_sgpr_count 2
  .amdhsa_user_sgpr_kernarg_segment_ptr 1
  .amdhsa_system_sgpr_workgroup_id_x 1
  .amdhsa_float_denorm_mode_32 3
.end_amdhsa_kernel
"""
out = [a for a in sys.argv[1:] if a.endswith(".s")]
out = out[0] if out else "k.s"
open(out, "w").write(src)
if PROF:
    open(out + ".names", "w").write("\n".join(PROF_NAMES))
print(f"{out}: {n} instructions, {nbytes} bytes, {nops} s_nop")
```
